```python
import torch

def _softmax(x, axis=-1):
    return torch.softmax(x, dim=axis)
def _gelu(x):
    return torch.nn.functional.gelu(x, approximate="tanh")
def _silu(x):
    return torch.nn.functional.silu(x)
def _sigmoid(x):
    return torch.sigmoid(x)
def _layernorm(x, axis=-1, eps=1e-5):
    m = x.mean(dim=axis, keepdim=True)
    v = x.var(dim=axis, keepdim=True, unbiased=False)
    return (x - m) / torch.sqrt(v + eps)
def _scatter_add(tgt, idx, src, axis=0):
    return tgt.clone().index_add_(axis, idx, src)
def _segment_sum(src, seg, n):
    out = torch.zeros((n,) + src.shape[1:], dtype=src.dtype)
    return out.index_add_(0, seg, src)
def _pad(x, pw):
    flat = tuple(v for pair in reversed(pw) for v in pair)
    return torch.nn.functional.pad(x, flat)

kernel_name = 'recurrent_scan__sliding_block_cached__swiglu_ffn__decode'

def setup_inputs():

    _w = (lambda a: (lambda t: t.to(torch.bfloat16) if t.is_floating_point() else t)(torch.as_tensor(a)))
    def _A_setup():
        B, Sq, D = 1, 1, 448
        Hq, Hkv, Sk, Dh = 16, 8, 65536, 256
        assert Hq % Hkv == 0, (Hq, Hkv)
        return {
            "x": _w((lambda *s: torch.randn(*s, dtype=torch.bfloat16) * 0.05)(B, Sq, D)),
            "k_cache": _w((lambda *s: torch.randn(*s, dtype=torch.bfloat16) * 1.6)(B, Hkv, Sk, Dh)),
            "v_cache": _w((lambda *s: torch.randn(*s, dtype=torch.bfloat16) * 0.2)(B, Hkv, Sk, Dh)),
            "wq": _w((lambda *s: torch.randn(*s, dtype=torch.bfloat16) * 1.6)(D, Hq * Dh) * (D ** -0.5)),
            "wo": _w((lambda *s: torch.randn(*s, dtype=torch.bfloat16) * 0.2)(Hq * Dh, D) * ((Hq * Dh) ** -0.5)),
        }
    _A_in = _A_setup()

    def _B_setup():
        B, S, D, F = 1, 1, 448, 1792
        return {
            "x": _w((lambda *s: torch.randn(*s, dtype=torch.bfloat16) * 0.05)(B, S, D)),
            "w_gate": _w((lambda *s: torch.randn(*s, dtype=torch.bfloat16) * 0.1)(D, F)),
            "w_up": _w((lambda *s: torch.randn(*s, dtype=torch.bfloat16) * 0.1)(D, F)),
            "w_down": _w((lambda *s: torch.randn(*s, dtype=torch.bfloat16) * 0.1)(F, D)),
        }
    _B_in = _B_setup()

    return {
        "A_x": _A_in["x"],
        "A_k_cache": _A_in["k_cache"],
        "A_v_cache": _A_in["v_cache"],
        "A_wq": _A_in["wq"],
        "A_wo": _A_in["wo"],
        "B_x": _B_in["x"],
        "B_w_gate": _B_in["w_gate"],
        "B_w_up": _B_in["w_up"],
        "B_w_down": _B_in["w_down"],
    }

def reference(A_x, A_k_cache, A_v_cache, A_wq, A_wo, B_x, B_w_gate, B_w_up, B_w_down):
    def _A_ref(x, k_cache, v_cache, wq, wo):
        B, Sq, D = x.shape
        Hq, Dh = 16, 256
        Hkv, Sk = k_cache.shape[1], k_cache.shape[2]
        W = min(4096, max(256, Sk // 4))
        rep = Hq // Hkv
        q = (lambda x, *d: x.permute(*d))((x @ wq).reshape(B, Sq, Hq, Dh), 0, 2, 1, 3)
        k = (lambda x, n, axis: torch.repeat_interleave(x, n, dim=axis))(k_cache[:, :, Sk - W:, :], rep, axis=1)
        v = (lambda x, n, axis: torch.repeat_interleave(x, n, dim=axis))(v_cache[:, :, Sk - W:, :], rep, axis=1)
        scores = torch.einsum("bhqd,bhkd->bhqk", q, k) * (Dh ** -0.5)
        p = _softmax(scores, axis=-1)
        o = torch.einsum("bhqk,bhkd->bhqd", p, v)
        return (lambda x, *d: x.permute(*d))(o, 0, 2, 1, 3).reshape(B, Sq, Hq * Dh) @ wo

    def _B_ref(x, w_gate, w_up, w_down):
        g = _silu(x @ w_gate)
        u = x @ w_up
        return (g * u) @ w_down

    x = A_x
    xn = _layernorm(x, axis=-1)
    s = _A_ref(xn, A_k_cache, A_v_cache, A_wq, A_wo)
    g = _silu(_B_ref(xn, B_w_gate, B_w_up, B_w_down))
    return x + s * g
```

```python
import re

_REG = re.compile(r'\b([vsa])(\d+)\b|\b([vsa])\[(\d+):(\d+)\]|\b(vcc|exec|m0|scc)\b')

def regs_of(tok):
    out = []
    for m in _REG.finditer(tok):
        if m.group(1):
            out.append((m.group(1), int(m.group(2))))
        elif m.group(3):
            out += [(m.group(3), i) for i in range(int(m.group(4)), int(m.group(5)) + 1)]
        else:
            out.append((m.group(6), 0))
    return out

TRANS = ("v_exp_f32", "v_log_f32", "v_rcp_f32", "v_rsq_f32", "v_sqrt_f32", "v_sin_f32", "v_cos_f32")

class Emitter:
    def __init__(self):
        self.lines = []
        self.hist = []
        self.nops = 0

    def raw(self, s):
        self.lines.append(s)

    def comment(self, s):
        self.lines.append("; " + s)

    def label(self, name):
        self._flush()
        self.lines.append(name + ":")

    def _flush(self):
        need = 0
        for age, h in enumerate(reversed(self.hist)):
            req = {"mfma": 8, "valu": 2, "dot": 3, "trans": 2, "valu_s": 5, "store": 2}.get(h["k"], 0)
            if h.get("sw"): req = max(req, 5)
            dist = self._dist(len(self.hist) - 1 - age)
            need = max(need, req - dist)
        if need > 0:
            self._nop(need)
        self.hist = []

    def _dist(self, idx):
        return sum(h["ws"] for h in self.hist[idx + 1:])

    def _nop(self, n):
        while n > 0:
            k = min(n, 16)
            self.lines.append(f"s_nop {k-1}")
            self.hist.append(dict(k="nop", wr=[], rd=[], ws=k))
            self.nops += 1
            n -= k

    def __call__(self, text):
        for ln in text.strip().split("\n"):
            ln = ln.strip()
            if not ln or ln.startswith(";"):
                self.lines.append(ln); continue
            if ln.endswith(":"):
                self.label(ln[:-1]); continue
            self.ins(ln)

    def ins(self, ln):
        code = ln.split(";")[0].strip()
        parts = code.split(None, 1)
        mn = parts[0]
        if mn.startswith(("s_cbranch", "s_branch", "s_setpc", "s_swappc")):
            self._flush()
        ops = [o.strip() for o in parts[1].split(",")] if len(parts) > 1 else []
        isdpp = ("_dpp" in mn) or any(k in code for k in ("quad_perm", "row_shl", "row_shr", "row_ror", "row_bcast", "row_mirror", "row_half_mirror", "row_newbcast"))
        issdwa = "_sdwa" in mn
        wr, rd = [], []
        k = "other"
        srcC = []; srcAB = []
        if mn.startswith("v_mfma"):
            k = "mfma"; wr = regs_of(ops[0]); srcAB = regs_of(ops[1]) + regs_of(ops[2]); srcC = regs_of(ops[3]); rd = srcAB + srcC
        elif mn.startswith("v_cmp"):
            k = "valu"; wr = regs_of(ops[0]); rd = sum((regs_of(o) for o in ops[1:]), [])
        elif mn.startswith("v_permlane") and "swap" in mn:
            k = "valu"; wr = regs_of(ops[0]) + regs_of(ops[1]); rd = list(wr)
        elif mn.startswith("v_readlane") or mn.startswith("v_readfirstlane"):
            k = "valu"; wr = regs_of(ops[0]); rd = sum((regs_of(o) for o in ops[1:]), [])
        elif mn.startswith("v_"):
            k = "trans" if mn.replace("_e32", "").replace("_e64", "") in TRANS else ("dot" if mn.startswith("v_dot") else "valu")
            wr = regs_of(ops[0]); rest = ops[1:]
            if mn.startswith(("v_add_co", "v_sub_co", "v_addc_co", "v_subb_co", "v_mad_u64", "v_div_scale")):
                wr += regs_of(ops[1]); rest = ops[2:]
            rd = sum((regs_of(o) for o in rest), [])
            if mn.startswith(("v_fmac", "v_dot2c", "v_writelane", "v_mac")) or isdpp or issdwa:
                rd += regs_of(ops[0])
            if mn.startswith("v_cndmask") and len(ops) == 3: rd.append(("vcc", 0))
        elif mn.startswith(("buffer_load", "global_load")):
            k = "vmem"; wr = regs_of(ops[0]); rd = sum((regs_of(o) for o in ops[1:]), [])
        elif mn.startswith(("buffer_store", "buffer_atomic")):
            k = "store" if ("x4" in mn or "x3" in mn) else "vmem"; rd = sum((regs_of(o) for o in ops), [])
            sdata = regs_of(ops[0])
        elif mn.startswith(("global_store", "global_atomic")):
            k = "store" if ("x4" in mn or "x3" in mn) else "vmem"; rd = sum((regs_of(o) for o in ops), [])
            sdata = regs_of(ops[1])
        elif mn.startswith("ds_"):
            k = "ds"
            if mn.startswith(("ds_read", "ds_bpermute", "ds_permute", "ds_swizzle")) or "_rtn" in mn:
                wr = regs_of(ops[0]); rd = sum((regs_of(o) for o in ops[1:]), [])
            else:
                rd = sum((regs_of(o) for o in ops), [])
        elif mn.startswith("s_"):
            k = "salu"
            if mn.startswith(("s_cmp", "s_cbranch", "s_branch", "s_waitcnt", "s_barrier", "s_nop", "s_sleep", "s_setprio", "s_endpgm", "s_bitcmp")):
                rd = sum((regs_of(o) for o in ops), [])
            else:
                wr = regs_of(ops[0]) if ops else []; rd = sum((regs_of(o) for o in ops[1:]), [])
                pass
        need = 0
        isvalu = k in ("valu", "trans", "dot")
        isperml = mn.startswith("v_permlane")
        isrl = mn.startswith(("v_readlane", "v_readfirstlane", "v_writelane"))
        rds = set(rd); wrs = set(wr)
        vr = {r for r in rds if r[0] in "va"}; sr = {r for r in rds if r[0] == "s" or r[0] == "vcc"}
        for idx in range(len(self.hist) - 1, -1, -1):
            h = self.hist[idx]
            d = self._dist(idx)
            if d >= 20: break
            hw = set(h["wr"])
            hv = {r for r in hw if r[0] in "va"}; hs = {r for r in hw if r[0] == "s" or r[0] == "vcc"}
            req = 0
            if h["k"] in ("valu", "trans", "dot"):
                if hv & vr:
                    if isdpp or isperml: req = max(req, 2)
                    if isrl and not mn.startswith('v_writelane'): req = max(req, 1)
                    if k == "mfma": req = max(req, 2)
                    if h["k"] == "trans" and isvalu and k != "trans": req = max(req, 1)
                    if h["k"] == "trans" and k in ("vmem", "store", "ds", "mfma"): req = max(req, 1)
                    if h.get("sdwa") and isvalu: req = max(req, 1)
                if h["k"] == "dot" and (hv & (vr | wrs)):
                    same = (h["mn"] == mn)
                    if same and k == "dot":
                        ab = set(regs_of(ops[1]) + regs_of(ops[2]))
                        if hv & ab: req = max(req, 3)
                    else:
                        req = max(req, 3)
                if hs & sr:
                    if isvalu or k == "mfma": req = max(req, 4 if isrl else 2)
                    if k in ("vmem", "store"): req = max(req, 5)
                    if k == "salu": req = max(req, 1)
                    if mn.startswith(("s_load", "s_buffer")): req = max(req, 5)
            if h["k"] == "mfma":
                if k == "mfma":
                    if hv & set(srcAB): req = max(req, 8)
                    if hv & set(srcC):
                        if hv != set(srcC): req = max(req, 6)
                    elif hv & wrs: req = max(req, 8)
                elif hv & (vr | wrs): req = max(req, 8)
                if isvalu and (set(h.get("srcC", [])) & wrs): req = max(req, 3)
            if h["k"] == "store" and (set(h["sdata"]) & wrs): req = max(req, 2)
            need = max(need, req - d)
        if need > 0: self._nop(need)
        self.lines.append(ln)
        e = dict(k=k, wr=wr, rd=rd, ws=1, mn=mn, sdwa=issdwa, srcC=srcC, sw=any(r[0] == "s" or r[0] == "vcc" for r in wr) and isvalu)
        if k == "store": e["sdata"] = sdata
        if mn == "s_nop": e["ws"] = int(ops[0], 0) + 1
        self.hist.append(e)
        if mn.startswith(("s_cbranch", "s_branch")):
            pass
        if len(self.hist) > 64: self.hist = self.hist[-40:]

    def text(self):
        return "\n".join(self.lines) + "\n"
```

```python
import sys
sys.path.insert(0, "dev")
from emit import Emitter
import struct

KNAME = "recurrent_scan__sliding_block_cached__swiglu_ffn__decode_kernel"
HEADER = open("recurrent_scan__sliding_block_cached__swiglu_ffn__decode.s.ref").read().split("; Override launch geometry")[0]

WS_Q     = 0x1000
WS_ST    = 0x8000
WS_H1    = 0x10000
WS_H2    = 0x100000
WS_DBG   = 0x400000
WS_SIZE  = 0x1000000
OOB      = 0x7ffffff0
L_Q, L_S, L_AT, L_F = 0x000, 0x400, 0xC00, 0xC80
F_SC, F_IS, F_O, F_H, F_PUB = L_F, L_F + 4, L_F + 8, L_F + 12, L_F + 16
LOG2E = 1.4426950408889634
def f32(x): return "0x%08x" % struct.unpack("<I", struct.pack("<f", x))[0]
DPPM = "row_mask:0xf bank_mask:0xf"

def gen(stamps=False, wflag=" nt", sflag="", gflag="", stagger1=9, stagger2=3, spin_max=1 << 18, n_early=16, kvprio=2, auxprio=3):
    E = Emitter()
    A = E
    role = ["kv"]
    def spair(i):
        if role[0] == "kv":
            return 88 + 2 * i if i < 7 else 70 + 2 * (i - 7)
        return 88 + 2 * (i % 7)
    def stamp(i):
        if stamps:
            p = spair(i)
            A(f"s_memrealtime s[{p}:{p+1}]")
    def sflush(idx, vreg):
        if stamps:
            for i in idx:
                A(f"v_writelane_b32 v{vreg}, s{spair(i)}, {i}")
    def stamps_out(idx, vreg, wave_s):
        if not stamps: return
        A("s_waitcnt lgkmcnt(0)")
        sflush(idx, vreg)
        A(f"s_lshl_b32 s7, s2, 10\ns_lshl_b32 s68, {wave_s}, 6\ns_add_u32 s7, s7, s68\ns_add_u32 s7, s7, {WS_DBG}")
        A(f"v_lshlrev_b32 v1, 2, v0\nv_add_u32 v1, s7, v1\nv_cmp_gt_u32 vcc, 16, v0\nv_mov_b32 v2, {OOB}\nv_cndmask_b32 v1, v2, v1, vcc")
        A(f"buffer_store_dword v{vreg}, v1, s[8:11], 0 offen")

    def allreduce16(regs, op="add"):
        for mod in ("quad_perm:[1,0,3,2]", "quad_perm:[2,3,0,1]", "row_ror:4", "row_ror:8"):
            for r in regs:
                A(f"v_{op}_f32_dpp v{r}, v{r}, v{r} {mod} {DPPM}")

    def wave_sum_to_sgpr(r, s):
        allreduce16([r])
        A(f"v_add_f32_dpp v{r}, v{r}, v{r} row_bcast:15 row_mask:0xa bank_mask:0xf")
        A(f"v_add_f32_dpp v{r}, v{r}, v{r} row_bcast:31 row_mask:0xc bank_mask:0xf")
        A(f"v_readlane_b32 s{s}, v{r}, 63")

    def round_bf16(r, t):
        A(f"v_cvt_pk_bf16_f32 v{t}, v{r}, v{r}")
        A(f"v_and_b32 v{r}, 0xffff0000, v{t}")

    def lds_wait(label, cmp, cnt="s63", tmp="v26", addr="v24"):
        A.label(label)
        A(f"ds_read_b32 {tmp}, {addr}")
        A(f"s_add_u32 {cnt}, {cnt}, 1")
        A("s_waitcnt lgkmcnt(0)")
        A(f"v_readfirstlane_b32 s7, {tmp}")
        A(f"s_cmp_gt_u32 {cnt}, {spin_max}\ns_cbranch_scc1 L_end")
        A(f"{cmp}\ns_cbranch_scc1 {label}")

    A.raw(HEADER.rstrip())
    A.raw("; @launch grid=(256,1,1) block=(512,1,1) lds=4096")
    A.raw('.amdgcn_target "amdgcn-amd-amdhsa--gfx950"')
    A.raw(".text")
    A.raw(f".globl {KNAME}\n.p2align 8\n.type {KNAME},@function\n{KNAME}:")
    A("s_cmp_ge_u32 s2, 256")
    A("s_cbranch_scc1 L_end")
    A("s_load_dwordx16 s[16:31], s[0:1], 0")
    A("s_load_dwordx8 s[32:39], s[0:1], 64")
    stamp(0)
    A("v_lshrrev_b32 v1, 6, v0")
    A("v_and_b32 v0, 63, v0")
    A("v_readfirstlane_b32 s3, v1")
    A("s_and_b32 s4, s2, 7")
    A("s_lshr_b32 s5, s2, 3")
    A("v_and_b32 v2, 15, v0")
    A("v_lshrrev_b32 v3, 4, v0")
    A("s_cmp_lt_u32 s3, 4")
    A("s_cbranch_scc1 L_kv")

    role[0] = "aux"
    WB = 64
    XP = 16
    A(f"s_setprio {auxprio}")
    A("s_sub_u32 s3, s3, 4")
    A("v_lshrrev_b32 v14, 1, v0\nv_and_b32 v15, 1, v0")
    A("v_mul_u32_u24 v4, 28, v14")
    A("v_mul_u32_u24 v5, 0x1c000, v14\nv_lshl_add_u32 v5, v15, 4, v5")
    for k in range(1, 14):
        A(f"s_mov_b32 s{47+k}, {8192*k}")
    A("s_lshl_b32 s7, s4, 10\ns_lshl_b32 s44, s5, 5\ns_add_u32 s7, s7, s44")
    A("s_mov_b32 s42, 896\ns_mov_b32 s43, 0x20000\ns_sub_u32 s46, 3670016, s7\ns_mov_b32 s47, 0x20000")
    A("s_waitcnt lgkmcnt(0)")
    A("s_mov_b32 s40, s16\ns_mov_b32 s41, s17")
    A("s_add_u32 s44, s22, s7\ns_addc_u32 s45, s23, 0")
    A("s_cmp_gt_u32 s3, 1\ns_cbranch_scc1 L_aux_b0")
    A(f"buffer_load_dwordx4 v[{XP}:{XP+3}], v4, s[40:43], 0 offen")
    A(f"buffer_load_dwordx3 v[{XP+4}:{XP+6}], v4, s[40:43], 0 offen offset:16")
    A("s_cmp_eq_u32 s3, 0\ns_cbranch_scc1 L_aux_b0")
    for k in range(14):
        r = WB + 4 * k
        A(f"buffer_load_dwordx4 v[{r}:{r+3}], v5, s[44:47], {('s%d' % (47+k)) if k else '0'} offen{sflag}")
    A.label("L_aux_b0")
    A("s_barrier")
    A("s_branch L_aux")

    role[0] = "kv"
    A.label("L_kv")
    KB, VB = 64, 128
    A("s_lshl_b32 s6, s4, 25\ns_add_u32 s6, s6, 0x1e00000\ns_lshl_b32 s7, s5, 16\ns_add_u32 s6, s6, s7")
    A("v_and_b32 v4, 7, v2\nv_lshlrev_b32 v4, 9, v4\nv_lshrrev_b32 v5, 3, v2\nv_lshl_add_u32 v4, v5, 6, v4\nv_lshl_add_u32 v4, v3, 4, v4")
    A("s_lshl_b32 s7, s3, 14\nv_add_u32 v4, s7, v4")
    A("v_and_b32 v6, 7, v2\nv_lshlrev_b32 v6, 4, v6\nv_lshl_add_u32 v6, v5, 14, v6\nv_lshl_add_u32 v6, v3, 12, v6")
    A("s_lshl_b32 s7, s3, 7\nv_add_u32 v6, s7, v6")
    A("s_mov_b32 s48, 0x1000\ns_mov_b32 s49, 0x2000\ns_mov_b32 s50, 0x3000\ns_mov_b32 s51, 0x8000")
    A("s_mov_b32 s42, 0x10000\ns_mov_b32 s43, 0x20000\ns_mov_b32 s46, 0x10000\ns_mov_b32 s47, 0x20000")
    A(f"s_mov_b32 s10, {WS_SIZE}\ns_mov_b32 s11, 0x20000")
    A("v_mov_b32 v8, 0\nv_mov_b32 v9, 0\nv_mov_b32 v10, 0\nv_mov_b32 v11, 0")
    if stamps: A("v_mov_b32 v31, 0")
    A(f"v_lshlrev_b32 v7, 4, v2\nv_add_u32 v7, {L_AT}, v7")
    A("s_cmp_lg_u32 s3, 0\ns_cbranch_scc1 L_kv_noz")
    A("ds_write_b128 v7, v[8:11]")
    A.label("L_kv_noz")
    A("s_waitcnt lgkmcnt(0)")
    A("s_add_u32 s40, s18, s6\ns_addc_u32 s41, s19, 0")
    A("s_add_u32 s44, s20, s6\ns_addc_u32 s45, s21, 0")
    A("s_mov_b32 s8, s38\ns_mov_b32 s9, s39")
    A("s_load_dword s6, s[38:39], 0")
    A("s_barrier")
    so = ["0", "s48", "s49", "s50"]
    loads = []
    for tau in range(4):
        for t in range(4):
            r = KB + 16 * tau + 4 * t
            loads.append(f"buffer_load_dwordx4 v[{r}:{r+3}], v4, s[40:43], {so[tau]} offen offset:{128*t} nt")
    for sg in range(2):
        for e in range(8):
            r = VB + 32 * sg + 4 * e
            loads.append(f"buffer_load_dwordx4 v[{r}:{r+3}], v6, s[44:47], {'0' if sg == 0 else 's51'} offen offset:{512*e} nt")
    for l in loads[:n_early]: A(l)
    stamp(1)
    A("s_waitcnt lgkmcnt(0)")
    A("s_mul_i32 s6, s6, 1664525\ns_add_u32 s6, s6, 1013904223")
    A("v_mov_b32 v12, s6")
    A("s_mov_b32 s52, 0x07060500\ns_mov_b32 s53, 0x07060501\ns_mov_b32 s54, 0x07060502\ns_mov_b32 s55, 0x07060503")
    A("s_mov_b32 s56, 0x05040100\ns_mov_b32 s57, 0x07060302")
    A("s_mov_b32 s58, 0x0c0c0400\ns_mov_b32 s59, 0x04000c0c")
    A("v_and_b32 v13, 1, v2\nv_lshlrev_b32 v13, 9, v13\nv_bfe_u32 v14, v2, 1, 1\nv_lshl_add_u32 v13, v14, 6, v13\nv_lshl_add_u32 v13, v3, 4, v13")
    A("v_lshrrev_b32 v16, 1, v3")
    A("v_lshlrev_b32 v15, 10, v16\nv_and_b32 v17, 1, v2\nv_lshl_add_u32 v15, v17, 9, v15\nv_and_b32 v17, 1, v3\nv_lshl_add_u32 v15, v17, 4, v15")
    A(f"s_lshl_b32 s7, s3, 7\ns_add_u32 s7, s7, {L_S}\nv_add_u32 v15, s7, v15")
    A("v_lshrrev_b32 v17, 1, v2\nv_cmp_eq_u32 s[60:61], v17, v16")
    A(f"v_bfe_u32 v18, v2, 2, 1\nv_lshlrev_b32 v18, 9, v18\nv_and_b32 v17, 1, v2\nv_lshl_add_u32 v18, v17, 7, v18\nv_lshl_add_u32 v18, v3, 5, v18\nv_add_u32 v18, {L_S}, v18")
    A(f"s_lshl_b32 s7, s4, 5\ns_lshl_b32 s62, s3, 3\ns_add_u32 s7, s7, s62\ns_lshl_b32 s7, s7, 11\ns_lshl_b32 s62, s5, 6\ns_add_u32 s7, s7, s62\ns_add_u32 s7, s7, {WS_H1}")
    A("v_lshlrev_b32 v19, 11, v2\nv_lshl_add_u32 v19, v3, 5, v19\nv_add_u32 v19, s7, v19")
    A(f"v_and_b32 v17, 0x28, v0\nv_cmp_eq_u32 vcc, 0, v17\nv_mov_b32 v17, {OOB}\nv_cndmask_b32 v19, v17, v19, vcc")
    A(f"s_lshl_b32 s7, s4, 5\ns_add_u32 s7, s7, s5\ns_lshl_b32 s62, s7, 4\ns_add_u32 s62, s62, {WS_ST}")
    A("v_mov_b32 v20, s62\nv_or_b32 v21, s3, v0\nv_cmp_eq_u32 vcc, 0, v21\nv_cndmask_b32 v20, v17, v20, vcc")
    A(f"s_lshl_b32 s62, s7, 11\ns_add_u32 s62, s62, {WS_H1}\nv_lshlrev_b32 v22, 5, v0\nv_add_u32 v22, s62, v22")
    A(f"s_lshl_b32 s62, s4, 9\ns_add_u32 s62, s62, {WS_ST}\nv_lshrrev_b32 v23, 1, v0\nv_lshlrev_b32 v23, 4, v23\nv_add_u32 v23, s62, v23")
    A(f"v_mov_b32 v24, {F_SC}\nv_mov_b32 v25, 1")
    A(f"s_mov_b32 s62, {f32(LOG2E/16)}\ns_mov_b32 s63, 0\ns_mul_i32 s64, s6, 3\ns_lshl_b32 s65, s6, 3")
    A("s_barrier")
    stamp(2)
    for l in loads[n_early:]: A(l)
    A(f"s_setprio {kvprio}")
    stamp(3)
    A("s_barrier")
    stamp(4)
    QB = 32
    for t in range(4):
        A(f"ds_read_b128 v[{QB+4*t}:{QB+4*t+3}], v13 offset:{L_Q + 128*t}")
    A("s_waitcnt vmcnt(16) lgkmcnt(0)")
    DB = 48
    for t in range(4):
        for tau in range(4):
            r = KB + 16 * tau + 4 * t
            c = "0" if t == 0 else f"v[{DB+4*tau}:{DB+4*tau+3}]"
            A(f"v_mfma_f32_16x16x32_bf16 v[{DB+4*tau}:{DB+4*tau+3}], v[{r}:{r+3}], v[{QB+4*t}:{QB+4*t+3}], {c}")
    A("s_mov_b64 exec, s[60:61]")
    for tau in range(4):
        A(f"ds_write_b128 v15, v[{DB+4*tau}:{DB+4*tau+3}] offset:{32*tau}")
    A("s_mov_b64 exec, 1")
    A("ds_add_u32 v24, v25")
    A("s_mov_b64 exec, -1")
    lds_wait("L_kv_w1", "s_cmp_lt_u32 s7, 4")
    stamp(5)
    for part in range(2):
        for sg in range(2):
            for hf in range(2):
                r = 64 + 16 * part + 8 * sg + 4 * hf
                A(f"ds_read_b128 v[{r}:{r+3}], v18 offset:{1024*part + 256*sg + 16*hf}")
    A("s_waitcnt lgkmcnt(0)")
    for i in range(8):
        A(f"v_pk_add_f32 v[{64+2*i}:{65+2*i}], v[{64+2*i}:{65+2*i}], v[{80+2*i}:{81+2*i}]")
    for i in range(8):
        A(f"v_cvt_pk_bf16_f32 v{80+i}, v{64+2*i}, v{65+2*i}")
    for i in range(8):
        A(f"v_lshlrev_b32 v{64+2*i}, 16, v{80+i}")
        A(f"v_and_b32 v{65+2*i}, 0xffff0000, v{80+i}")
    A("v_max3_f32 v96, v64, v65, v66\nv_max3_f32 v97, v67, v68, v69\nv_max3_f32 v98, v70, v71, v72\nv_max3_f32 v99, v73, v74, v75")
    A("v_max3_f32 v96, v96, v76, v77\nv_max3_f32 v97, v97, v78, v79\nv_max3_f32 v96, v96, v97, v98\nv_max_f32 v96, v96, v99")
    A(f"v_max_f32_dpp v96, v96, v96 quad_perm:[1,0,3,2] {DPPM}")
    A("v_mov_b32 v97, v96\nv_permlane16_swap_b32 v96, v97\nv_max_f32 v96, v96, v97")
    A("v_mov_b32 v97, v96\nv_permlane32_swap_b32 v96, v97\nv_max_f32 v96, v96, v97")
    A("v_mul_f32 v97, s62, v96")
    for i in range(16):
        A(f"v_fma_f32 v{64+i}, v{64+i}, s62, -v97")
    for i in range(16):
        A(f"v_exp_f32 v{64+i}, v{64+i}")
    PA = 100
    for i in range(8):
        A(f"v_cvt_pk_bf16_f32 v{PA+i}, v{64+2*i}, v{65+2*i}")
    for i in range(4):
        A(f"v_pk_add_f32 v[{64+2*i}:{65+2*i}], v[{64+2*i}:{65+2*i}], v[{72+2*i}:{73+2*i}]")
    for i in range(2):
        A(f"v_pk_add_f32 v[{64+2*i}:{65+2*i}], v[{64+2*i}:{65+2*i}], v[{68+2*i}:{69+2*i}]")
    A("v_pk_add_f32 v[64:65], v[64:65], v[66:67]\nv_add_f32 v98, v64, v65")
    A(f"v_add_f32_dpp v98, v98, v98 quad_perm:[1,0,3,2] {DPPM}")
    A("v_mov_b32 v97, v98\nv_permlane16_swap_b32 v98, v97\nv_add_f32 v98, v98, v97")
    A("v_mov_b32 v97, v98\nv_permlane32_swap_b32 v98, v97\nv_add_f32 v98, v98, v97")
    A(f"v_mov_b32_dpp v110, v96 row_shl:4 {DPPM} bound_ctrl:0")
    A(f"v_mov_b32_dpp v111, v98 row_shl:4 {DPPM} bound_ctrl:0")
    A("v_perm_b32 v108, v96, v12, s52\nv_perm_b32 v109, v98, v12, s53\nv_perm_b32 v110, v110, v12, s54\nv_perm_b32 v111, v111, v12, s55")
    stamp(6)
    FB, OB = 64, 32
    for sg in range(2):
        for p in range(4):
            A(f"s_waitcnt vmcnt({16 - (8*sg + 2*p + 2)})")
            ra = VB + 32 * sg + 8 * p; rb = ra + 4
            for q in range(4):
                A(f"v_perm_b32 v{FB + 4*(2*q) + p}, v{rb+q}, v{ra+q}, s56")
                A(f"v_perm_b32 v{FB + 4*(2*q+1) + p}, v{rb+q}, v{ra+q}, s57")
        for i in range(8):
            c = "0" if sg == 0 else f"v[{OB+4*i}:{OB+4*i+3}]"
            A(f"v_mfma_f32_16x16x32_bf16 v[{OB+4*i}:{OB+4*i+3}], v[{PA+4*sg}:{PA+4*sg+3}], v[{FB+4*i}:{FB+4*i+3}], {c}")
    stamp(7)
    for i in range(8):
        A(f"v_add_f32_dpp v{112+i}, v{OB+4*i+1}, v{OB+4*i} row_shl:8 {DPPM} bound_ctrl:0")
    for i in range(8):
        A(f"v_perm_b32 v{112+i}, v{112+i}, v12, s{52 + (i & 3)}")
    A("buffer_store_dwordx4 v[112:115], v19, s[8:11], 0 offen sc1")
    A("buffer_store_dwordx4 v[116:119], v19, s[8:11], 0 offen offset:16 sc1")
    A("buffer_store_dwordx4 v[108:111], v20, s[8:11], 0 offen sc1")
    stamp(8)
    A(f"v_mov_b32 v24, {F_O}")
    if stagger1:
        A("s_mov_b32 s7, s3")
        A.label("L_kv_stg")
        A("s_cmp_eq_u32 s7, 0\ns_cbranch_scc1 L_kv_p1")
        A(f"s_sleep {stagger1}\ns_sub_u32 s7, s7, 1\ns_branch L_kv_stg")
    A.label("L_kv_p1")
    A("buffer_load_dwordx4 v[64:67], v22, s[8:11], 0 offen sc1")
    A("buffer_load_dwordx4 v[68:71], v22, s[8:11], 0 offen offset:16 sc1")
    A("buffer_load_dwordx4 v[72:75], v23, s[8:11], 0 offen sc1")
    A("ds_read_b32 v26, v24")
    A("s_add_u32 s63, s63, 1")
    A("s_waitcnt lgkmcnt(0)")
    A("v_readfirstlane_b32 s7, v26")
    A("s_cmp_lg_u32 s7, 0\ns_cbranch_scc1 L_kv_h1done")
    A(f"s_cmp_gt_u32 s63, {spin_max}\ns_cbranch_scc1 L_end")
    A("s_waitcnt vmcnt(0)")
    for k in range(3):
        r = 64 + 4 * k
        A(f"v_perm_b32 v{76+2*k}, v{r+1}, v{r}, s58\nv_perm_b32 v{77+2*k}, v{r+3}, v{r+2}, s59")
    A("v_add3_u32 v76, v76, v77, v78\nv_add3_u32 v79, v79, v80, v81\nv_add_u32 v76, v76, v79")
    A("v_cmp_ne_u32 vcc, s64, v76")
    A("s_cbranch_vccnz L_kv_p1")
    stamp(9)
    A("v_and_b32 v76, 1, v0\nv_cmp_eq_u32 vcc, 1, v76")
    A("v_cndmask_b32 v77, v72, v74, vcc\nv_cndmask_b32 v78, v73, v75, vcc")
    A("v_and_b32 v77, 0xffff0000, v77")
    A(f"v_max_f32_dpp v79, v77, v77 quad_perm:[2,3,0,1] {DPPM}")
    A(f"v_max_f32_dpp v79, v79, v79 row_ror:4 {DPPM}")
    A(f"v_max_f32_dpp v79, v79, v79 row_ror:8 {DPPM}")
    A("v_mov_b32 v80, v79\nv_permlane16_swap_b32 v79, v80\nv_max_f32 v79, v79, v80")
    A("v_mov_b32 v80, v79\nv_permlane32_swap_b32 v79, v80\nv_max_f32 v79, v79, v80")
    A("v_sub_f32 v77, v77, v79\nv_mul_f32 v77, s62, v77\nv_exp_f32 v77, v77")
    A("v_mul_f32 v78, v78, v77")
    for i in range(8):
        A(f"v_mul_f32 v{64+i}, v{64+i}, v77")
    A(f"v_add_f32_dpp v78, v78, v78 quad_perm:[2,3,0,1] {DPPM}")
    for i in range(4):
        A(f"v_permlane32_swap_b32 v{64+i}, v{68+i}")
    A(f"v_add_f32_dpp v78, v78, v78 row_ror:4 {DPPM}")
    for i in range(4):
        A(f"v_add_f32 v{64+i}, v{64+i}, v{68+i}")
    A(f"v_add_f32_dpp v78, v78, v78 row_ror:8 {DPPM}")
    A("v_permlane16_swap_b32 v64, v66\nv_permlane16_swap_b32 v65, v67")
    A("v_mov_b32 v80, v78")
    A("v_add_f32 v64, v64, v66\nv_add_f32 v65, v65, v67")
    A("v_permlane16_swap_b32 v78, v80\nv_add_f32 v78, v78, v80")
    for mod in ("quad_perm:[2,3,0,1]", "row_ror:4", "row_ror:8"):
        A(f"v_add_f32_dpp v64, v64, v64 {mod} {DPPM}")
        A(f"v_add_f32_dpp v65, v65, v65 {mod} {DPPM}")
        if mod == "quad_perm:[2,3,0,1]":
            A("v_mov_b32 v80, v78\nv_permlane32_swap_b32 v78, v80\nv_add_f32 v78, v78, v80\nv_rcp_f32 v78, v78")
    A("v_mul_f32 v64, v64, v78\nv_mul_f32 v65, v65, v78\nv_cvt_pk_bf16_f32 v64, v64, v65")
    A(f"v_lshlrev_b32 v80, 4, v76\nv_lshl_add_u32 v80, v3, 2, v80\nv_add_u32 v80, {L_AT}, v80")
    A("s_mov_b32 s66, 0x00030003\ns_mov_b32 s67, 0x00030003\ns_mov_b64 exec, s[66:67]")
    A("ds_write_b32 v80, v64")
    A("s_mov_b64 exec, 1")
    A("ds_write_b32 v24, v25")
    A("s_mov_b64 exec, -1")
    A.label("L_kv_h1done")
    stamp(10)
    A("s_cmp_ge_u32 s2, 112\ns_cbranch_scc1 L_kv_fin")
    A("s_waitcnt vmcnt(0)")
    A("s_mov_b32 s40, s16\ns_mov_b32 s41, s17\ns_mov_b32 s42, 896\ns_mov_b32 s43, 0x20000")
    A("s_mov_b32 s44, s34\ns_mov_b32 s45, s35\ns_mov_b32 s46, 896\ns_mov_b32 s47, 0x20000")
    A("s_lshl_b32 s7, s2, 3\nv_lshlrev_b32 v27, 1, v3\nv_add_u32 v27, s7, v27")
    A("buffer_load_ushort v28, v27, s[40:43], 0 offen")
    A(f"v_cmp_eq_u32 vcc, 0, v2\nv_mov_b32 v17, {OOB}\nv_cndmask_b32 v27, v17, v27, vcc")
    A(f"s_lshl_b32 s7, s2, 13\ns_add_u32 s7, s7, {WS_H2}\nv_lshlrev_b32 v22, 5, v0\nv_add_u32 v22, s7, v22\nv_add_u32 v23, 0x1000, v22")
    A(f"v_mov_b32 v24, {F_PUB}")
    lds_wait("L_kv_w2", "s_cmp_lt_u32 s7, 4")
    stamp(11)
    if stagger2:
        A("s_mov_b32 s7, s3")
        A.label("L_kv_stg2")
        A("s_cmp_eq_u32 s7, 0\ns_cbranch_scc1 L_kv_p2")
        A(f"s_sleep {stagger2}\ns_sub_u32 s7, s7, 1\ns_branch L_kv_stg2")
    A.label("L_kv_p2")
    for k in range(4):
        va = "v22" if k < 2 else "v23"
        A(f"buffer_load_dwordx4 v[{64+8*k}:{67+8*k}], {va}, s[8:11], 0 offen offset:{2048*(k&1)} sc1")
        A(f"buffer_load_dwordx4 v[{68+8*k}:{71+8*k}], {va}, s[8:11], 0 offen offset:{2048*(k&1)+16} sc1")
    A("s_add_u32 s63, s63, 1")
    A(f"s_cmp_gt_u32 s63, {spin_max}\ns_cbranch_scc1 L_end")
    for k in range(8):
        r = 64 + 4 * k
        A(f"s_waitcnt vmcnt({7-k})")
        A(f"v_perm_b32 v{96+2*k}, v{r+1}, v{r}, s58\nv_perm_b32 v{97+2*k}, v{r+3}, v{r+2}, s59")
        if k == 0:
            A("v_add_u32 v112, v96, v97")
        else:
            A(f"v_add3_u32 v112, v112, v{96+2*k}, v{97+2*k}")
    A("v_cmp_ne_u32 vcc, s65, v112")
    A("s_cbranch_vccnz L_kv_p2")
    stamp(12)
    for i in range(4):
        A(f"v_pk_add_f32 v[{64+2*i}:{65+2*i}], v[{64+2*i}:{65+2*i}], v[{72+2*i}:{73+2*i}]\nv_pk_add_f32 v[{80+2*i}:{81+2*i}], v[{80+2*i}:{81+2*i}], v[{88+2*i}:{89+2*i}]")
    for i in range(4):
        A(f"v_pk_add_f32 v[{64+2*i}:{65+2*i}], v[{64+2*i}:{65+2*i}], v[{80+2*i}:{81+2*i}]")
    A("v_permlane32_swap_b32 v64, v66\nv_permlane32_swap_b32 v65, v67\nv_permlane32_swap_b32 v68, v70\nv_permlane32_swap_b32 v69, v71")
    A("v_add_f32 v64, v64, v66\nv_add_f32 v65, v65, v67\nv_add_f32 v68, v68, v70\nv_add_f32 v69, v69, v71")
    A("v_permlane16_swap_b32 v64, v65\nv_permlane16_swap_b32 v68, v69")
    A("v_add_f32 v64, v64, v65\nv_add_f32 v68, v68, v69")
    allreduce16([64, 68])
    A("v_cvt_pk_bf16_f32 v65, v64, v68")
    A("v_and_b32 v68, 0xffff0000, v65\nv_lshlrev_b32 v64, 16, v65")
    A(f"v_mul_f32 v66, {f32(-LOG2E)}, v68\nv_exp_f32 v66, v66\nv_add_f32 v66, 1.0, v66\nv_rcp_f32 v66, v66\nv_mul_f32 v66, v68, v66")
    round_bf16(66, 67)
    A("v_mul_f32 v64, v64, v66")
    round_bf16(64, 67)
    A("v_lshlrev_b32 v28, 16, v28\nv_add_f32 v64, v64, v28\nv_cvt_pk_bf16_f32 v64, v64, v64")
    A("buffer_store_short v64, v27, s[44:47], 0 offen")
    stamp(13)
    A("s_cmp_lg_u32 s2, 0\ns_cbranch_scc1 L_kv_fin")
    A("v_lshlrev_b32 v28, 24, v0")
    A("buffer_store_dword v12, v28, s[8:11], 0 offen")
    A.label("L_kv_fin")
    stamp(14)
    stamps_out(range(15), 31, "s3")
    A("s_endpgm")

    role[0] = "aux"
    A.label("L_aux")
    A(f"s_mov_b32 s8, s38\ns_mov_b32 s9, s39\ns_mov_b32 s10, {WS_SIZE}\ns_mov_b32 s11, 0x20000")
    A("s_load_dword s6, s[38:39], 0")
    if stamps:
        A("v_mov_b32 v63, 0\ns_mov_b32 s90, 0\ns_mov_b32 s98, 0")
    A("s_min_u32 s7, s5, 27\ns_mul_i32 s44, s4, 28\ns_add_u32 s7, s7, s44")
    A("s_lshl_b32 s44, s7, 4\nv_mul_u32_u24 v11, 0xc400, v14\nv_add_u32 v11, s44, v11")
    A("v_cmp_eq_u32 vcc, 0, v15")
    A("v_mov_b32 v60, s30\nv_mov_b32 v13, s28\nv_cndmask_b32 v60, v60, v13, vcc")
    A("v_mov_b32 v61, s31\nv_mov_b32 v13, s29\nv_cndmask_b32 v61, v61, v13, vcc")
    A("v_add_co_u32 v60, vcc, v60, v11\nv_addc_co_u32 v61, vcc, 0, v61, vcc")
    A("s_lshl_b32 s44, s4, 9\ns_lshl_b32 s45, s5, 3\ns_add_u32 s44, s44, s45\ns_mul_i32 s44, s44, 896")
    A("s_add_u32 s44, s24, s44\ns_addc_u32 s45, s25, 0")
    A("s_mul_i32 s46, s7, 7168\ns_add_u32 s46, s32, s46\ns_addc_u32 s47, s33, 0")
    A("v_min_u32 v11, 13, v2\ns_mul_i32 s48, s3, 224\ns_add_u32 s48, s48, 3584\nv_lshlrev_b32 v11, 4, v11\nv_add_u32 v11, s48, v11")
    A("v_cmp_eq_u32 vcc, 1, v3\nv_mov_b32 v13, 229376\nv_cndmask_b32 v13, 0, v13, vcc\nv_add_u32 v11, v11, v13")
    A("v_cmp_gt_u32 vcc, 2, v3")
    A("v_mov_b32 v6, s46\nv_mov_b32 v13, s44\nv_cndmask_b32 v6, v6, v13, vcc")
    A("v_mov_b32 v7, s47\nv_mov_b32 v13, s45\nv_cndmask_b32 v7, v7, v13, vcc")
    A("v_add_co_u32 v6, vcc, v6, v11\nv_addc_co_u32 v7, vcc, 0, v7, vcc")
    A(f"s_mul_i32 s48, s3, {28*8192}\ns_lshl_b32 s49, s2, 5\ns_add_u32 s48, s48, s49\ns_add_u32 s48, s48, {WS_H2}")
    A("v_lshlrev_b32 v8, 14, v2\nv_lshrrev_b32 v13, 1, v3\nv_lshl_add_u32 v8, v13, 13, v8\nv_and_b32 v13, 1, v3\nv_lshl_add_u32 v8, v13, 4, v8\nv_add_u32 v8, s48, v8")
    A(f"v_cmp_gt_u32 vcc, 14, v2\nv_mov_b32 v11, {OOB}\nv_cndmask_b32 v8, v11, v8, vcc")
    A(f"v_bfe_u32 v9, v2, 2, 1\nv_lshlrev_b32 v9, 6, v9\nv_lshl_add_u32 v9, v3, 4, v9\nv_add_u32 v9, {L_AT}, v9")
    A(f"s_lshl_b32 s48, s4, 11\ns_add_u32 s48, s48, {WS_Q}\ns_lshl_b32 s49, s5, 6\ns_add_u32 s49, s49, s48")
    A("v_lshlrev_b32 v10, 5, v15\nv_lshl_add_u32 v10, v3, 3, v10\nv_add_u32 v10, s49, v10\nv_and_b32 v13, 14, v0\nv_cmp_eq_u32 vcc, 0, v13\nv_cndmask_b32 v10, v11, v10, vcc")
    A("s_lshl_b32 s49, s3, 9\ns_add_u32 s49, s49, s48\ns_add_u32 s18, s8, s49\ns_addc_u32 s19, s9, 0")
    A("s_mov_b32 s20, 0x05040100\ns_mov_b32 s21, 0x07060302")
    A("s_mov_b32 s12, 0x07060500\ns_mov_b32 s13, 0x07060501\ns_mov_b32 s14, 0x07060502\ns_mov_b32 s15, 0x07060503")
    A(f"s_lshl_b32 s7, s3, 8\nv_lshlrev_b32 v14, 2, v0\nv_add_u32 v14, s7, v14")
    A(f"v_mov_b32 v26, {F_IS}\nv_mov_b32 v27, 1")
    A("s_waitcnt lgkmcnt(0)")
    A("s_mul_i32 s6, s6, 1664525\ns_add_u32 s6, s6, 1013904223")
    A("v_mov_b32 v12, s6")
    A("s_lshl_b32 s22, s6, 5\ns_mov_b32 s23, 0")
    A("s_cmp_gt_u32 s3, 1\ns_cbranch_scc1 L_aux_bq")
    A("s_waitcnt vmcnt(14)")
    A("s_cmp_eq_u32 s3, 1\ns_cbranch_scc1 L_aux_ln")
    A("s_waitcnt vmcnt(0)")
    A.label("L_aux_ln")
    def pr(i): return f"v[{i}:{i+1}]"
    for p in range(7):
        A(f"v_lshlrev_b32 v{32+2*p}, 16, v{XP+p}\nv_and_b32 v{33+2*p}, 0xffff0000, v{XP+p}")
    A(f"v_pk_add_f32 {pr(46)}, {pr(32)}, {pr(34)}\nv_pk_add_f32 {pr(48)}, {pr(36)}, {pr(38)}\nv_pk_add_f32 {pr(50)}, {pr(40)}, {pr(42)}")
    A(f"v_pk_add_f32 {pr(46)}, {pr(46)}, {pr(44)}\nv_pk_add_f32 {pr(48)}, {pr(48)}, {pr(50)}\nv_pk_add_f32 {pr(46)}, {pr(46)}, {pr(48)}\nv_add_f32 v46, v46, v47")
    wave_sum_to_sgpr(46, 48)
    A(f"v_mov_b32 v62, {f32(1.0/896)}\nv_mul_f32 v46, s48, v62")
    for p in range(7):
        A(f"v_pk_add_f32 {pr(48 + 2*(p % 6)) if p < 6 else pr(24)}, {pr(32+2*p)}, {pr(46)} op_sel_hi:[1,0] neg_lo:[0,1] neg_hi:[0,1]")
    A(f"v_pk_mul_f32 {pr(24)}, {pr(24)}, {pr(24)}")
    for p in range(6):
        A(f"v_pk_fma_f32 {pr(24)}, {pr(48+2*p)}, {pr(48+2*p)}, {pr(24)}")
    A("v_add_f32 v24, v24, v25")
    wave_sum_to_sgpr(24, 48)
    A("v_mul_f32 v24, s48, v62")
    A("v_cvt_pk_bf16_f32 v25, v46, v24\nv_lshlrev_b32 v46, 16, v25\nv_and_b32 v24, 0xffff0000, v25")
    A(f"v_add_f32 v24, {f32(1e-5)}, v24")
    round_bf16(24, 25)
    A("v_sqrt_f32 v24, v24")
    round_bf16(24, 25)
    A("v_rcp_f32 v28, v24")
    for p in range(7):
        A(f"v_pk_add_f32 {pr(32+2*p)}, {pr(32+2*p)}, {pr(46)} op_sel_hi:[1,0] neg_lo:[0,1] neg_hi:[0,1]")
    for p in range(7):
        A(f"v_cvt_pk_bf16_f32 v{XP+p}, v{32+2*p}, v{33+2*p}")
    for p in range(7):
        A(f"v_lshlrev_b32 v{32+2*p}, 16, v{XP+p}\nv_and_b32 v{33+2*p}, 0xffff0000, v{XP+p}")
    for p in range(7):
        A(f"v_pk_mul_f32 {pr(46+2*p)}, {pr(32+2*p)}, {pr(28)} op_sel_hi:[1,0]")
    for p in range(7):
        A(f"v_pk_fma_f32 {pr(32+2*p)}, {pr(46+2*p)}, {pr(24)}, {pr(32+2*p)} op_sel_hi:[1,0,1] neg_lo:[1,0,0] neg_hi:[1,0,0]")
    for p in range(7):
        A(f"v_pk_fma_f32 {pr(46+2*p)}, {pr(32+2*p)}, {pr(28)}, {pr(46+2*p)} op_sel_hi:[1,0,1]")
    for p in range(7):
        A(f"v_cvt_pk_bf16_f32 v{XP+p}, v{46+2*p}, v{47+2*p}")
    A("s_cmp_eq_u32 s3, 0\ns_cbranch_scc1 L_aux_bq")

    def gemv8(total):
        for i in range(8):
            A(f"v_mov_b32 v{32+i}, 0")
        for u in range(7):
            A(f"s_waitcnt vmcnt({total - (2*u + 2)})")
            ra = WB + 8 * u; rb = ra + 4
            for q in range(4):
                A(f"v_perm_b32 v{40+2*q}, v{rb+q}, v{ra+q}, s20\nv_perm_b32 v{41+2*q}, v{rb+q}, v{ra+q}, s21")
            for q in range(8):
                A(f"v_dot2c_f32_bf16 v{32+q}, v{40+q}, v{XP+u}")
        for i in range(4):
            A(f"v_permlane32_swap_b32 v{32+i}, v{36+i}")
        A(f"v_pk_add_f32 {pr(32)}, {pr(32)}, {pr(36)}\nv_pk_add_f32 {pr(34)}, {pr(34)}, {pr(38)}")
        A("v_permlane16_swap_b32 v32, v34\nv_permlane16_swap_b32 v33, v35")
        A(f"v_pk_add_f32 {pr(32)}, {pr(32)}, {pr(34)}")
        for mod in ("quad_perm:[2,3,0,1]", "row_ror:4", "row_ror:8"):
            A(f"v_add_f32_dpp v32, v32, v32 {mod} {DPPM}\nv_add_f32_dpp v33, v33, v33 {mod} {DPPM}")

    gemv8(14)
    A("v_cvt_pk_bf16_f32 v32, v32, v33\nv_mov_b32 v33, v12")
    A("buffer_store_dwordx2 v[32:33], v10, s[8:11], 0 offen sc1")
    stamp(1)
    A.label("L_aux_bq")
    A("s_barrier")
    GB = 24
    for rnd in range(2):
        A.label(f"L_aux_g{rnd}")
        for i in range(4):
            A(f"s_load_dwordx16 s[{GB+16*i}:{GB+16*i+15}], s[18:19], {64*(4*rnd+i)} glc")
        A("s_add_u32 s23, s23, 1")
        A(f"s_cmp_gt_u32 s23, {spin_max}\ns_cbranch_scc1 L_end")
        A("s_waitcnt lgkmcnt(0)")
        A(f"s_add_u32 s7, s{GB+1}, s{GB+3}")
        for i in range(2, 32):
            A(f"s_add_u32 s7, s7, s{GB+1+2*i}")
        A(f"s_cmp_lg_u32 s7, s22\ns_cbranch_scc1 L_aux_g{rnd}")
        for i in range(32):
            A(f"v_writelane_b32 v13, s{GB+2*i}, {32*rnd+i}")
    A(f"ds_write_b32 v14, v13 offset:{L_Q}")
    sflush([0, 1], 63)
    stamp(2)
    A("s_mov_b32 s48, 7168\ns_mov_b32 s49, 0")
    A("s_waitcnt lgkmcnt(0)")
    A("s_barrier")
    stamp(3)
    A("s_cmp_lg_u32 s3, 0\ns_cbranch_scc1 L_aux_wis")
    A("s_cmp_gt_u32 s5, 27\ns_cbranch_scc1 L_aux_noffn")
    for u in range(7):
        r = WB + 8 * u
        A(f"global_load_dwordx4 v[{r}:{r+3}], v[60:61], off{gflag}")
        A(f"global_load_dwordx4 v[{r+4}:{r+7}], v[60:61], off offset:3584{gflag}")
        if u < 6:
            A("v_lshl_add_u64 v[60:61], v[60:61], 0, s[48:49]")
    A.label("L_aux_noffn")
    A("s_mov_b64 exec, 1\nds_write_b32 v26, v27\ns_mov_b64 exec, -1")
    A("s_branch L_aux_iss")
    lds_wait("L_aux_wis", "s_cmp_eq_u32 s7, 0", cnt="s23", tmp="v28", addr="v26")
    A.label("L_aux_iss")
    OW = 128
    for e in range(8):
        A(f"global_load_dwordx4 v[{OW+4*e}:{OW+4*e+3}], v[6:7], off offset:{896*e - 3584}{wflag}")
    stamp(4)
    A("s_cmp_lg_u32 s3, 0\ns_cbranch_scc1 L_aux_perm")
    A("v_mov_b32 v32, 0")
    A("s_cmp_gt_u32 s5, 27\ns_cbranch_scc1 L_aux_hw")
    gemv8(22)
    A("v_cvt_pk_bf16_f32 v34, v32, v33")
    A(f"v_mov_b32_dpp v42, v34 quad_perm:[1,0,3,2] {DPPM}")
    A("v_lshlrev_b32 v32, 16, v34\nv_and_b32 v33, 0xffff0000, v34\nv_lshlrev_b32 v40, 16, v42\nv_and_b32 v41, 0xffff0000, v42")
    A(f"v_mul_f32 v34, {f32(-LOG2E)}, v32\nv_mul_f32 v35, {f32(-LOG2E)}, v33\nv_exp_f32 v34, v34\nv_exp_f32 v35, v35")
    A("v_add_f32 v34, 1.0, v34\nv_add_f32 v35, 1.0, v35\nv_rcp_f32 v34, v34\nv_rcp_f32 v35, v35")
    A("v_mul_f32 v32, v32, v34\nv_mul_f32 v33, v33, v35\nv_cvt_pk_bf16_f32 v34, v32, v33")
    A("v_lshlrev_b32 v32, 16, v34\nv_and_b32 v33, 0xffff0000, v34")
    A("v_mul_f32 v32, v32, v40\nv_mul_f32 v33, v33, v41\nv_cvt_pk_bf16_f32 v32, v32, v33")
    A.label("L_aux_hw")
    A(f"v_lshlrev_b32 v33, 2, v3\nv_add_u32 v33, {L_AT + 64 + 32}, v33\nv_mov_b32 v26, {F_H}")
    A("s_mov_b32 s48, 0x00010001\ns_mov_b32 s49, 0x00010001\ns_mov_b64 exec, s[48:49]")
    A("ds_write_b32 v33, v32")
    A("s_mov_b64 exec, 1\nds_write_b32 v26, v27\ns_mov_b64 exec, -1")
    stamp(5)
    A.label("L_aux_perm")
    FB2 = 64
    for p in range(4):
        A(f"s_waitcnt vmcnt({6-2*p})")
        ra = OW + 8 * p; rb = ra + 4
        for q in range(4):
            A(f"v_perm_b32 v{FB2 + 4*(2*q) + p}, v{rb+q}, v{ra+q}, s20")
            A(f"v_perm_b32 v{FB2 + 4*(2*q+1) + p}, v{rb+q}, v{ra+q}, s21")
    stamp(6)
    A(f"v_mov_b32 v26, {F_O}")
    A("s_mov_b32 s48, 0\ns_mov_b32 s49, -1")
    A.label("L_aux_w3")
    A("ds_read_b64 v[24:25], v26")
    A("ds_read_b128 v[28:31], v9")
    A("s_add_u32 s23, s23, 1")
    A("s_waitcnt lgkmcnt(0)")
    A("v_and_b32 v24, v24, v25")
    A("v_readfirstlane_b32 s7, v24")
    A(f"s_cmp_gt_u32 s23, {spin_max}\ns_cbranch_scc1 L_end")
    A("s_cmp_eq_u32 s7, 0\ns_cbranch_scc1 L_aux_w3")
    stamp(7)
    for i in range(8):
        A(f"v_mfma_f32_16x16x32_bf16 v[{96+4*i}:{99+4*i}], v[28:31], v[{FB2+4*i}:{FB2+4*i+3}], 0")
    for k in range(4):
        A(f"v_cndmask_b32 v{32+k}, v{96+4*k}, v{112+4*k}, s[48:49]")
    for k in range(4):
        A(f"v_perm_b32 v{32+k}, v{32+k}, v12, s{12+k}")
    A("buffer_store_dwordx4 v[32:35], v8, s[8:11], 0 offen sc1")
    A(f"v_mov_b32 v26, {F_PUB}")
    A("s_mov_b64 exec, 1\nds_add_u32 v26, v27\ns_mov_b64 exec, -1")
    stamp(8)
    if stamps:
        A("s_add_u32 s3, s3, 4")
    stamps_out([2, 3, 4, 5, 6, 7, 8], 63, "s3")
    A.label("L_end")
    A("s_endpgm")
    A.raw('.section .rodata,"a"\n.p2align 6')
    A.raw(f".amdhsa_kernel {KNAME}\n  .amdhsa_next_free_vgpr 192\n  .amdhsa_next_free_sgpr 102\n  .amdhsa_accum_offset 192\n  .amdhsa_group_segment_fixed_size 0\n  .amdhsa_kernarg_size 96\n  .amdhsa_user_sgpr_count 2\n  .amdhsa_user_sgpr_kernarg_segment_ptr 1\n  .amdhsa_system_sgpr_workgroup_id_x 1\n.end_amdhsa_kernel")
    return E.text()

if __name__ == "__main__":
    out = sys.argv[1] if len(sys.argv) > 1 else "recurrent_scan__sliding_block_cached__swiglu_ffn__decode.s"
    kw = {}
    for a in sys.argv[2:]:
        k, v = a.split("=", 1)
        kw[k] = eval(v)
    open(out, "w").write(gen(**kw))
```

```python
import sys
sys.path.insert(0, "dev")
from emit import Emitter
import struct

KNAME = "recurrent_scan__sliding_block_cached__swiglu_ffn__decode_kernel"
HEADER = open("recurrent_scan__sliding_block_cached__swiglu_ffn__decode.s.ref").read().split("; Override launch geometry")[0]

WS_P1    = 0x10000
WS_PF    = 0x20000
WS_Q     = 0x80000
WS_H1    = 0x100000
WS_H2    = 0x200000
WS_DBG   = 0x400000
WS_SIZE  = 0x1000000
OOB      = 0x7ffffff0
L_Q, L_S, L_AT, L_F = 0x000, 0x400, 0xC00, 0xC80
F_SC, F_MIX, F_O, F_H, F_PUB, F_ST = L_F, L_F + 4, L_F + 8, L_F + 12, L_F + 16, L_F + 20
LOG2E = 1.4426950408889634
def f32(x): return "0x%08x" % struct.unpack("<I", struct.pack("<f", x))[0]
DPPM = "row_mask:0xf bank_mask:0xf"
def pr(i): return f"v[{i}:{i+1}]"

def gen(stamps=False, wflag=" nt", tflag=" nt", stagger1=2, stagger2=3, spin_max=1 << 18, n1=16, n2=8, kvprio=2, auxprio=3,
        gsleep=0, h1sleep=0, h2sleep=0, nowo=False, kdelay=0, nokv=False, notile=False, h1p=4, h2p=4, fast1=True, fast2=True,
        warm1=True, force_mix=False):
    E = Emitter()
    A = E
    def spair(i):
        return 88 + 2 * i if i < 7 else 70 + 2 * (i - 7)
    def stamp(i):
        if stamps:
            p = spair(i)
            A(f"s_memrealtime s[{p}:{p+1}]")
    def stamps_out(idx, vreg, wave_s):
        if not stamps: return
        A("s_waitcnt lgkmcnt(0)")
        for i in idx:
            A(f"v_writelane_b32 v{vreg}, s{spair(i)}, {i}")
        A(f"s_lshl_b32 s7, s2, 10\ns_lshl_b32 s40, {wave_s}, 6\ns_add_u32 s7, s7, s40\ns_add_u32 s7, s7, {WS_DBG}")
        A(f"v_lshlrev_b32 v1, 2, v0\nv_add_u32 v1, s7, v1\nv_cmp_gt_u32 vcc, 16, v0\nv_mov_b32 v2, {OOB}\nv_cndmask_b32 v1, v2, v1, vcc")
        A(f"buffer_store_dword v{vreg}, v1, s[8:11], 0 offen")

    def allreduce16(regs, op="add"):
        for mod in ("quad_perm:[1,0,3,2]", "quad_perm:[2,3,0,1]", "row_ror:4", "row_ror:8"):
            for r in regs:
                A(f"v_{op}_f32_dpp v{r}, v{r}, v{r} {mod} {DPPM}")

    def wave_sum_to_sgpr(r, s):
        allreduce16([r])
        A(f"v_add_f32_dpp v{r}, v{r}, v{r} row_bcast:15 row_mask:0xa bank_mask:0xf")
        A(f"v_add_f32_dpp v{r}, v{r}, v{r} row_bcast:31 row_mask:0xc bank_mask:0xf")
        A(f"v_readlane_b32 s{s}, v{r}, 63")

    def round_bf16(r, t):
        A(f"v_cvt_pk_bf16_f32 v{t}, v{r}, v{r}")
        A(f"v_and_b32 v{r}, 0xffff0000, v{t}")

    def swapadd(kind, r, t, op="add"):
        A(f"v_mov_b32 v{t}, v{r}\nv_permlane{kind}_swap_b32 v{r}, v{t}\nv_{op}_f32 v{r}, v{r}, v{t}")

    def lds_wait(label, cmp, cnt="s63", tmp="v26", addr="v24"):
        A.label(label)
        A(f"ds_read_b32 {tmp}, {addr}")
        A(f"s_add_u32 {cnt}, {cnt}, 1")
        A("s_waitcnt lgkmcnt(0)")
        A(f"v_readfirstlane_b32 s7, {tmp}")
        A(f"s_cmp_gt_u32 {cnt}, {spin_max}\ns_cbranch_scc1 L_end")
        A(f"{cmp}\ns_cbranch_scc1 {label}")

    def epoch():
        A("s_mul_i32 s6, s6, 1664525\ns_add_u32 s6, s6, 1013904223")
        A("v_mov_b32 v12, s6")

    A.raw(HEADER.rstrip())
    A.raw("; @launch grid=(256,1,1) block=(512,1,1) lds=4096")
    A.raw('.amdgcn_target "amdgcn-amd-amdhsa--gfx950"')
    A.raw(".text")
    A.raw(f".globl {KNAME}\n.p2align 8\n.type {KNAME},@function\n{KNAME}:")
    A("s_cmp_ge_u32 s2, 256")
    A("s_cbranch_scc1 L_end")
    A("s_load_dwordx16 s[16:31], s[0:1], 0")
    A("s_load_dwordx8 s[32:39], s[0:1], 64")
    stamp(0)
    A("v_lshrrev_b32 v1, 6, v0")
    A("v_and_b32 v0, 63, v0")
    A("v_readfirstlane_b32 s3, v1")
    A("s_and_b32 s4, s2, 7")
    A("s_lshr_b32 s5, s2, 3")
    A("v_and_b32 v2, 15, v0")
    A("v_lshrrev_b32 v3, 4, v0")
    A("s_cmp_lt_u32 s3, 4")
    A("s_cbranch_scc1 L_kv")

    WB = 64
    XP = 16
    A(f"s_setprio {auxprio}")
    A("s_sub_u32 s3, s3, 4")
    A("s_mul_i32 s61, s4, 28\ns_min_u32 s7, s5, 27\ns_add_u32 s61, s61, s7")
    A("s_cmp_gt_u32 s3, 1\ns_cbranch_scc1 L_aux_b0")
    A("s_lshl_b32 s44, s4, 3\ns_lshr_b32 s45, s5, 2\ns_add_u32 s44, s44, s45")
    A("s_lshr_b32 s45, s61, 3")
    A("s_movk_i32 s48, 3584\ns_mov_b32 s46, 1605632")
    A("s_cmp_eq_u32 s3, 1")
    A("s_cselect_b32 s62, s5, s61\ns_cselect_b32 s63, s44, s45\ns_cselect_b32 s48, 0x2000, s48\ns_cselect_b32 s46, 3670016, s46")
    A("s_and_b32 s62, s62, 3")
    A("s_mul_i32 s7, s62, 112\ns_mul_i32 s44, s7, s48\ns_lshl_b32 s45, s63, 7\ns_add_u32 s44, s44, s45\ns_sub_u32 s46, s46, s44")
    A("s_lshl_b32 s7, s7, 1\ns_mul_i32 s45, s48, 14")
    A("v_and_b32 v14, 7, v0\nv_lshrrev_b32 v15, 3, v0")
    A("v_mul_u32_u24 v5, s45, v15\nv_lshl_add_u32 v5, v14, 4, v5")
    A("v_mul_u32_u24 v4, 28, v15\nv_add_u32 v4, s7, v4\nv_lshlrev_b32 v1, 4, v0")
    for k in range(2, 14):
        A(f"s_add_u32 s{47+k}, s{46+k}, s48")
    A("s_mov_b32 s42, 896\ns_mov_b32 s43, 0x20000\ns_mov_b32 s47, 0x20000")
    A("s_bitcmp1_b32 s61, 2")
    A("s_waitcnt lgkmcnt(0)")
    A("s_cselect_b64 s[28:29], s[30:31], s[28:29]")
    A("s_cmp_eq_u32 s3, 1")
    A("s_cselect_b64 s[28:29], s[22:23], s[28:29]")
    A("s_mov_b32 s40, s16\ns_mov_b32 s41, s17")
    A("s_add_u32 s44, s28, s44\ns_addc_u32 s45, s29, 0")
    A("s_lshl_b32 s7, s3, 5\ns_sub_u32 s7, s5, s7\ns_cmp_gt_i32 s7, 27\ns_cbranch_scc1 L_aux_b0")
    A("buffer_load_dwordx4 v[24:27], v1, s[40:43], 0 offen")
    A(f"buffer_load_dwordx4 v[{XP}:{XP+3}], v4, s[40:43], 0 offen")
    A(f"buffer_load_dwordx3 v[{XP+4}:{XP+6}], v4, s[40:43], 0 offen offset:16")
    for k in range(0 if notile else 14):
        r = WB + 4 * k
        A(f"buffer_load_dwordx4 v[{r}:{r+3}], v5, s[44:47], {('s%d' % (47+k)) if k else '0'} offen{tflag}")
    A.label("L_aux_b0")
    A("s_barrier")
    A("s_branch L_aux")

    A.label("L_kv")
    KB, VB = 64, 128
    A("s_lshl_b32 s6, s4, 25\ns_add_u32 s6, s6, 0x1e00000\ns_lshl_b32 s7, s5, 16\ns_add_u32 s6, s6, s7")
    A("v_and_b32 v4, 7, v2\nv_lshlrev_b32 v4, 9, v4\nv_lshrrev_b32 v5, 3, v2\nv_lshl_add_u32 v4, v5, 6, v4\nv_lshl_add_u32 v4, v3, 4, v4")
    A("s_lshl_b32 s7, s3, 14\nv_add_u32 v4, s7, v4")
    A("v_and_b32 v6, 7, v2\nv_lshlrev_b32 v6, 4, v6\nv_lshl_add_u32 v6, v5, 14, v6\nv_lshl_add_u32 v6, v3, 12, v6")
    A("s_lshl_b32 s7, s3, 7\nv_add_u32 v6, s7, v6")
    A("s_mov_b32 s48, 0x1000\ns_mov_b32 s49, 0x2000\ns_mov_b32 s50, 0x3000\ns_mov_b32 s51, 0x8000")
    A("s_mov_b32 s42, 0x10000\ns_mov_b32 s43, 0x20000\ns_mov_b32 s46, 0x10000\ns_mov_b32 s47, 0x20000")
    A(f"s_mov_b32 s10, {WS_SIZE}\ns_mov_b32 s11, 0x20000")
    A("s_lshl_b32 s7, s2, 3\nv_lshlrev_b32 v27, 1, v3\nv_add_u32 v27, s7, v27")
    A("v_mov_b32 v8, 0\nv_mov_b32 v9, 0\nv_mov_b32 v10, 0\nv_mov_b32 v11, 0")
    if stamps: A("v_mov_b32 v31, 0")
    A(f"v_lshlrev_b32 v7, 4, v2\nv_add_u32 v7, {L_AT}, v7")
    A("s_cmp_lg_u32 s3, 0\ns_cbranch_scc1 L_kv_noz")
    A("ds_write_b128 v7, v[8:11]")
    A.label("L_kv_noz")
    A("s_waitcnt lgkmcnt(0)")
    A("s_add_u32 s40, s18, s6\ns_addc_u32 s41, s19, 0")
    A("s_add_u32 s44, s20, s6\ns_addc_u32 s45, s21, 0")
    A("s_mov_b32 s8, s38\ns_mov_b32 s9, s39")
    A("s_load_dword s6, s[38:39], 0")
    A("s_mov_b32 s18, 896\ns_mov_b32 s19, 0x20000")
    A("s_mov_b32 s32, s34\ns_mov_b32 s33, s35\ns_mov_b32 s34, 896\ns_mov_b32 s35, 0x20000")
    A("buffer_load_ushort v28, v27, s[16:19], 0 offen")
    A("s_barrier")
    if kdelay: A(f"s_sleep {kdelay}")
    so = ["0", "s48", "s49", "s50"]
    loads = []
    for tau in range(4):
        for t in range(4):
            r = KB + 16 * tau + 4 * t
            loads.append(f"buffer_load_dwordx4 v[{r}:{r+3}], v4, s[40:43], {so[tau]} offen offset:{128*t} nt")
    for sg in range(2):
        for e in range(8):
            r = VB + 32 * sg + 4 * e
            loads.append(f"buffer_load_dwordx4 v[{r}:{r+3}], v6, s[44:47], {'0' if sg == 0 else 's51'} offen offset:{512*e} nt")
    if nokv: loads = []
    for l in loads[:n1]: A(l)
    stamp(1)
    A("s_waitcnt lgkmcnt(0)")
    epoch()
    A("s_mov_b32 s52, 0x07060500\ns_mov_b32 s53, 0x07060501\ns_mov_b32 s54, 0x07060502\ns_mov_b32 s55, 0x07060503")
    A("s_mov_b32 s56, 0x05040100\ns_mov_b32 s57, 0x07060302")
    A("s_mov_b32 s58, 0x0c0c0400\ns_mov_b32 s59, 0x04000c0c")
    A("v_and_b32 v13, 1, v2\nv_lshlrev_b32 v13, 9, v13\nv_bfe_u32 v14, v2, 1, 1\nv_lshl_add_u32 v13, v14, 6, v13\nv_lshl_add_u32 v13, v3, 4, v13")
    A("v_lshrrev_b32 v16, 1, v3")
    A("v_lshlrev_b32 v15, 10, v16\nv_and_b32 v17, 1, v2\nv_lshl_add_u32 v15, v17, 9, v15\nv_and_b32 v17, 1, v3\nv_lshl_add_u32 v15, v17, 4, v15")
    A(f"s_lshl_b32 s7, s3, 7\ns_add_u32 s7, s7, {L_S}\nv_add_u32 v15, s7, v15")
    A("v_lshrrev_b32 v17, 1, v2\nv_cmp_eq_u32 s[60:61], v17, v16")
    A(f"v_bfe_u32 v18, v2, 2, 1\nv_lshlrev_b32 v18, 9, v18\nv_and_b32 v17, 1, v2\nv_lshl_add_u32 v18, v17, 7, v18\nv_lshl_add_u32 v18, v3, 5, v18\nv_add_u32 v18, {L_S}, v18")
    A("s_barrier")
    stamp(2)
    for l in loads[n1:n1+n2]: A(l)
    A(f"s_lshl_b32 s7, s4, 5\ns_lshl_b32 s62, s3, 3\ns_add_u32 s7, s7, s62\ns_lshl_b32 s7, s7, 12\ns_lshl_b32 s62, s5, 7\ns_add_u32 s7, s7, s62\ns_add_u32 s7, s7, {WS_H1}")
    A("s_mov_b32 s68, 0\ns_mov_b32 s69, -1\ns_mov_b32 s12, 0xff00ff00\ns_mov_b32 s13, 0xff00ff00\ns_mov_b32 s14, 0xff000000\ns_mov_b32 s15, 0xff00ff00")
    A("v_and_b32 v17, 1, v3\nv_lshlrev_b32 v19, 5, v17\nv_lshl_add_u32 v19, v16, 4, v19\nv_mov_b32 v17, 64\nv_cndmask_b32 v19, v19, v17, s[12:13]")
    A(f"v_and_b32 v17, 7, v2\nv_lshl_add_u32 v19, v17, 12, v19\nv_add_u32 v19, s7, v19\nv_mov_b32 v17, {OOB}\nv_cndmask_b32 v19, v19, v17, s[14:15]")
    A("v_cmp_eq_u32 vcc, 0, v2\nv_cndmask_b32 v27, v17, v27, vcc")
    A(f"s_lshl_b32 s7, s2, 13\ns_add_u32 s7, s7, {WS_H2}\nv_lshlrev_b32 v22, 4, v0\nv_add_u32 v22, s7, v22")
    for k in range(8):
        A(f"s_add_u32 s7, s4, {k}\ns_and_b32 s7, s7, 7\ns_lshl_b32 s{20+k}, s7, 10")
    A(f"v_mov_b32 v24, {F_SC}\nv_mov_b32 v25, 1")
    A(f"s_mov_b32 s62, {f32(LOG2E/16)}\ns_mov_b32 s63, 0\ns_lshl_b32 s65, s6, 3")
    A("s_barrier")
    stamp(3)
    for l in loads[n1+n2:]: A(l)
    A(f"s_setprio {kvprio}")
    stamp(4)
    A("s_barrier")
    stamp(5)
    QB = 32
    for t in range(4):
        A(f"ds_read_b128 v[{QB+4*t}:{QB+4*t+3}], v13 offset:{L_Q + 128*t}")
    A("ds_read_b32 v29, v24 offset:4")
    A(f"s_waitcnt vmcnt({0 if nokv else 16}) lgkmcnt(0)")
    DB = 48
    for t in range(4):
        for tau in range(4):
            r = KB + 16 * tau + 4 * t
            c = "0" if t == 0 else f"v[{DB+4*tau}:{DB+4*tau+3}]"
            A(f"v_mfma_f32_16x16x32_bf16 v[{DB+4*tau}:{DB+4*tau+3}], v[{r}:{r+3}], v[{QB+4*t}:{QB+4*t+3}], {c}")
    A("v_readfirstlane_b32 s64, v29")
    A("s_mov_b64 exec, s[60:61]")
    for tau in range(4):
        A(f"ds_write_b128 v15, v[{DB+4*tau}:{DB+4*tau+3}] offset:{32*tau}")
    A("s_mov_b64 exec, 1")
    A("ds_add_u32 v24, v25")
    A("s_mov_b64 exec, -1")
    lds_wait("L_kv_w1", "s_cmp_lt_u32 s7, 4")
    stamp(6)
    for part in range(2):
        for sg in range(2):
            for hf in range(2):
                r = 64 + 16 * part + 8 * sg + 4 * hf
                A(f"ds_read_b128 v[{r}:{r+3}], v18 offset:{1024*part + 256*sg + 16*hf}")
    A("s_waitcnt lgkmcnt(0)")
    for i in range(8):
        A(f"v_pk_add_f32 {pr(64+2*i)}, {pr(64+2*i)}, {pr(80+2*i)}")
    for i in range(8):
        A(f"v_cvt_pk_bf16_f32 v{80+i}, v{64+2*i}, v{65+2*i}")
    for i in range(8):
        A(f"v_lshlrev_b32 v{64+2*i}, 16, v{80+i}")
        A(f"v_and_b32 v{65+2*i}, 0xffff0000, v{80+i}")
    A("v_max3_f32 v96, v64, v65, v66\nv_max3_f32 v97, v67, v68, v69\nv_max3_f32 v98, v70, v71, v72\nv_max3_f32 v99, v73, v74, v75")
    A("v_max3_f32 v96, v96, v76, v77\nv_max3_f32 v97, v97, v78, v79\nv_max3_f32 v96, v96, v97, v98\nv_max_f32 v96, v96, v99")
    A(f"v_max_f32_dpp v96, v96, v96 quad_perm:[1,0,3,2] {DPPM}")
    swapadd(16, 96, 97, "max")
    swapadd(32, 96, 97, "max")
    A("v_mul_f32 v97, s62, v96")
    for i in range(16):
        A(f"v_fma_f32 v{64+i}, v{64+i}, s62, -v97")
    for i in range(16):
        A(f"v_exp_f32 v{64+i}, v{64+i}")
    PA = 100
    for i in range(8):
        A(f"v_cvt_pk_bf16_f32 v{PA+i}, v{64+2*i}, v{65+2*i}")
    for i in range(4):
        A(f"v_pk_add_f32 {pr(64+2*i)}, {pr(64+2*i)}, {pr(72+2*i)}")
    for i in range(2):
        A(f"v_pk_add_f32 {pr(64+2*i)}, {pr(64+2*i)}, {pr(68+2*i)}")
    A("v_pk_add_f32 v[64:65], v[64:65], v[66:67]\nv_add_f32 v98, v64, v65")
    A(f"v_add_f32_dpp v98, v98, v98 quad_perm:[1,0,3,2] {DPPM}")
    swapadd(16, 98, 97)
    swapadd(32, 98, 97)
    A(f"v_mov_b32_dpp v108, v96 row_newbcast:0 {DPPM}\nv_mov_b32_dpp v109, v98 row_newbcast:0 {DPPM}")
    A(f"v_mov_b32_dpp v110, v96 row_newbcast:4 {DPPM}\nv_mov_b32_dpp v111, v98 row_newbcast:4 {DPPM}")
    stamp(7)
    FB, OB = 64, 32
    for sg in range(2):
        for p in range(4):
            if not nokv: A(f"s_waitcnt vmcnt({16 - (8*sg + 2*p + 2)})")
            ra = VB + 32 * sg + 8 * p; rb = ra + 4
            for q in range(4):
                A(f"v_perm_b32 v{FB + 4*(2*q) + p}, v{rb+q}, v{ra+q}, s56")
                A(f"v_perm_b32 v{FB + 4*(2*q+1) + p}, v{rb+q}, v{ra+q}, s57")
        for i in range(8):
            c = "0" if sg == 0 else f"v[{OB+4*i}:{OB+4*i+3}]"
            A(f"v_mfma_f32_16x16x32_bf16 v[{OB+4*i}:{OB+4*i+3}], v[{PA+4*sg}:{PA+4*sg+3}], v[{FB+4*i}:{FB+4*i+3}], {c}")
    stamp(8)
    for i in range(8):
        A(f"v_add_f32_dpp v{112+i}, v{OB+4*i+1}, v{OB+4*i} row_shl:8 {DPPM} bound_ctrl:0")
    for i in range(4):
        A(f"v_cndmask_b32 v{112+i}, v{112+i}, v{116+i}, s[68:69]")
    for i in range(4):
        A(f"v_cndmask_b32 v{112+i}, v{112+i}, v{108+i}, s[12:13]")
    for i in range(4):
        A(f"v_perm_b32 v{112+i}, v{112+i}, v12, s{52 + i}")
    if fast1:
        A("s_cmp_lg_u32 s64, 0\ns_cbranch_scc1 L_kv_st1")
        A("buffer_store_dwordx4 v[112:115], v19, s[8:11], 0 offen")
        A("s_branch L_kv_st2")
        A.label("L_kv_st1")
    A("buffer_store_dwordx4 v[112:115], v19, s[8:11], 0 offen sc1")
    A.label("L_kv_st2")
    A(f"v_mov_b32 v24, {F_ST}")
    A("s_mov_b64 exec, 1\nds_add_u32 v24, v25\ns_mov_b64 exec, -1")
    stamp(9)
    A("s_cmp_ge_u32 s2, 112\ns_cbranch_scc1 L_kv_fin")
    if h2p < 4: A(f"s_cmp_ge_u32 s3, {h2p}\ns_cbranch_scc1 L_kv_fin")
    A(f"v_mov_b32 v24, {F_PUB}\ns_mov_b64 s[66:67], -1")
    lds_wait("L_kv_w2", "s_cmp_lt_u32 s7, 4")
    stamp(11)
    if stagger2:
        A("s_mov_b32 s7, s3")
        A.label("L_kv_stg2")
        A("s_cmp_eq_u32 s7, 0\ns_cbranch_scc1 L_kv_p2")
        A(f"s_sleep {stagger2}\ns_sub_u32 s7, s7, 1\ns_branch L_kv_stg2")
    A.label("L_kv_p2")
    A("s_mov_b64 exec, s[66:67]")
    for k in range(8):
        A(f"buffer_load_dwordx4 v[{64+4*k}:{67+4*k}], v22, s[8:11], s{20+k} offen sc1")
    A("s_add_u32 s63, s63, 1")
    A(f"s_cmp_gt_u32 s63, {spin_max}\ns_cbranch_scc1 L_end")
    for k in range(8):
        r = 64 + 4 * k
        A(f"s_waitcnt vmcnt({7-k})")
        A(f"v_perm_b32 v{96+2*k}, v{r+1}, v{r}, s58\nv_perm_b32 v{97+2*k}, v{r+3}, v{r+2}, s59")
        if k == 0:
            A("v_add_u32 v112, v96, v97")
        else:
            A(f"v_add3_u32 v112, v112, v{96+2*k}, v{97+2*k}")
    A("v_cmp_ne_u32 s[66:67], s65, v112")
    A("s_cmp_lg_u64 s[66:67], 0")
    if h2sleep:
        A(f"s_cbranch_scc0 L_kv_p2d\ns_sleep {h2sleep}\ns_branch L_kv_p2")
        A.label("L_kv_p2d")
    else:
        A("s_cbranch_scc1 L_kv_p2")
    A("s_mov_b64 exec, -1")
    stamp(12)
    for st_ in (16, 8, 4):
        for base in range(64, 64 + st_, 2):
            A(f"v_pk_add_f32 {pr(base)}, {pr(base)}, {pr(base+st_)}")
    A("v_permlane32_swap_b32 v64, v66\nv_permlane32_swap_b32 v65, v67")
    A(f"v_pk_add_f32 {pr(64)}, {pr(64)}, {pr(66)}")
    A("v_permlane16_swap_b32 v64, v65")
    A("v_add_f32 v64, v64, v65")
    for mod in ("quad_perm:[2,3,0,1]", "row_ror:4", "row_ror:8"):
        A(f"v_add_f32_dpp v64, v64, v64 {mod} {DPPM}")
    A(f"v_mov_b32_dpp v68, v64 quad_perm:[1,0,3,2] {DPPM}")
    A("v_cvt_pk_bf16_f32 v65, v64, v68")
    A("v_and_b32 v68, 0xffff0000, v65\nv_lshlrev_b32 v64, 16, v65")
    A(f"v_mul_f32 v66, {f32(-LOG2E)}, v68\nv_exp_f32 v66, v66\nv_add_f32 v66, 1.0, v66\nv_rcp_f32 v66, v66\nv_mul_f32 v66, v68, v66")
    round_bf16(66, 67)
    A("v_mul_f32 v64, v64, v66")
    round_bf16(64, 67)
    A("v_lshlrev_b32 v28, 16, v28\nv_add_f32 v64, v64, v28\nv_cvt_pk_bf16_f32 v64, v64, v64")
    A("buffer_store_short v64, v27, s[32:35], 0 offen")
    stamp(13)
    A("s_cmp_lg_u32 s2, 0\ns_cbranch_scc1 L_kv_fin")
    A("v_lshlrev_b32 v28, 24, v0")
    A("buffer_store_dword v12, v28, s[8:11], 0 offen")
    A.label("L_kv_fin")
    stamp(14)
    stamps_out([0,1,2,3,4,5,6,7,8,9,11,12,13,14], 31, "s3")
    A("s_endpgm")

    A.label("L_aux")
    A(f"s_mov_b32 s8, s38\ns_mov_b32 s9, s39\ns_mov_b32 s10, {WS_SIZE}\ns_mov_b32 s11, 0x20000")
    A("s_load_dword s6, s[38:39], 0")
    A("s_getreg_b32 s17, hwreg(HW_REG_XCC_ID, 0, 3)")
    if stamps:
        A("v_mov_b32 v63, 0\ns_mov_b32 s90, 0\ns_mov_b32 s92, 0\ns_mov_b32 s100, 0")
    A("s_mov_b32 s20, 0x05040100\ns_mov_b32 s21, 0x07060302")
    A("s_mov_b32 s12, 0x07060500\ns_mov_b32 s13, 0x07060501\ns_mov_b32 s14, 0x07060502\ns_mov_b32 s15, 0x07060503")
    A("s_lshl_b32 s16, s4, 5\ns_add_u32 s16, s16, s5")
    A("s_lshl_b32 s44, s4, 9\ns_lshl_b32 s45, s5, 3\ns_add_u32 s44, s44, s45\ns_mul_i32 s44, s44, 896")
    A("s_add_u32 s44, s24, s44\ns_addc_u32 s45, s25, 0")
    A("s_mul_i32 s46, s61, 7168\ns_add_u32 s46, s32, s46\ns_addc_u32 s47, s33, 0")
    A("s_lshl_b32 s48, s3, 8\ns_add_u32 s48, s48, 3584\nv_lshlrev_b32 v11, 4, v2\nv_add_u32 v11, s48, v11")
    A("v_cmp_eq_u32 vcc, 1, v3\nv_mov_b32 v13, 229376\nv_cndmask_b32 v13, 0, v13, vcc\nv_add_u32 v11, v11, v13")
    A("v_cmp_gt_u32 vcc, 2, v3")
    A("v_mov_b32 v6, s46\nv_mov_b32 v13, s44\nv_cndmask_b32 v6, v6, v13, vcc")
    A("v_mov_b32 v7, s47\nv_mov_b32 v13, s45\nv_cndmask_b32 v7, v7, v13, vcc")
    A("v_add_co_u32 v6, vcc, v6, v11\nv_addc_co_u32 v7, vcc, 0, v7, vcc")
    A("v_lshrrev_b32 v13, 1, v3\nv_lshl_add_u32 v13, v2, 1, v13\ns_lshl_b32 s48, s3, 5\nv_add_u32 v13, s48, v13")
    A(f"s_lshl_b32 s48, s16, 5\ns_add_u32 s48, s48, {WS_H2}\nv_and_b32 v8, 1, v3\nv_lshlrev_b32 v8, 4, v8\nv_lshl_add_u32 v8, v13, 13, v8\nv_add_u32 v8, s48, v8")
    A(f"v_mov_b32 v11, {OOB}\nv_cmp_gt_u32 vcc, 112, v13\nv_cndmask_b32 v8, v11, v8, vcc")
    A("v_and_b32 v13, 7, v13\nv_cmp_eq_u32 vcc, s4, v13\nv_cndmask_b32 v62, v11, v8, vcc\nv_cndmask_b32 v61, v8, v11, vcc")
    A(f"v_bfe_u32 v9, v2, 2, 1\nv_lshlrev_b32 v9, 6, v9\nv_lshl_add_u32 v9, v3, 4, v9\nv_add_u32 v9, {L_AT}, v9")
    A(f"s_lshl_b32 s48, s16, 11\ns_lshl_b32 s49, s3, 9\ns_add_u32 s49, s49, s48\ns_add_u32 s49, s49, {WS_Q}\ns_add_u32 s18, s8, s49\ns_addc_u32 s19, s9, 0")
    A("s_waitcnt lgkmcnt(0)")
    epoch()
    A("v_and_b32 v13, 3, v0\nv_lshlrev_b32 v13, 3, v13\nv_bfe_u32 v60, v12, v13, 8")
    A("s_lshl_b32 s17, s17, 29\ns_and_b32 s7, s6, 0x1fffffff\ns_or_b32 s17, s17, s7")
    A("s_lshl_b32 s22, s6, 3\ns_mov_b32 s23, 0")
    A("s_lshl_b32 s7, s3, 5\ns_sub_u32 s7, s5, s7\ns_cmp_gt_i32 s7, 27\ns_cbranch_scc1 L_aux_bq1")
    A("s_cmp_gt_u32 s3, 1\ns_cbranch_scc1 L_aux_bq1")
    A(f"s_and_b32 s44, s16, 0xfc\ns_lshl_b32 s44, s44, 8\ns_lshl_b32 s45, s62, 6\ns_add_u32 s44, s44, s45\ns_add_u32 s44, s44, {WS_P1}")
    A(f"s_and_b32 s45, s61, 0xf8\ns_lshl_b32 s45, s45, 8\ns_and_b32 s46, s61, 7\ns_lshl_b32 s46, s46, 5\ns_add_u32 s45, s45, s46\ns_add_u32 s45, s45, {WS_PF}")
    A("v_lshrrev_b32 v10, 1, v14\nv_lshlrev_b32 v10, 8, v10\nv_and_b32 v13, 1, v14\nv_lshl_add_u32 v10, v13, 5, v10\nv_lshlrev_b32 v13, 8, v14")
    A("s_cmp_eq_u32 s3, 1\ns_cselect_b32 s44, s44, s45\ns_cselect_b64 vcc, -1, 0")
    A("v_cndmask_b32 v10, v13, v10, vcc\nv_lshrrev_b32 v13, 5, v0\nv_lshl_add_u32 v10, v13, 4, v10\nv_add_u32 v10, s44, v10")
    A("v_and_b32 v13, 0x18, v0\nv_cmp_eq_u32 vcc, 0, v13\nv_cndmask_b32 v10, v11, v10, vcc")
    A(f"s_waitcnt vmcnt({2 if notile else 16})")
    for p in range(4):
        A(f"v_lshlrev_b32 v{32+2*p}, 16, v{24+p}\nv_and_b32 v{33+2*p}, 0xffff0000, v{24+p}")
    A(f"v_pk_add_f32 {pr(46)}, {pr(32)}, {pr(34)}\nv_pk_add_f32 {pr(48)}, {pr(36)}, {pr(38)}\nv_pk_add_f32 {pr(46)}, {pr(46)}, {pr(48)}\nv_add_f32 v46, v46, v47")
    wave_sum_to_sgpr(46, 48)
    A(f"v_mov_b32 v30, {f32(1.0/448)}\nv_mul_f32 v46, s48, v30")
    A("v_cmp_gt_u32 vcc, 56, v0")
    for p in range(4):
        A(f"v_pk_add_f32 {pr(32+2*p)}, {pr(32+2*p)}, {pr(46)} op_sel_hi:[1,0] neg_lo:[0,1] neg_hi:[0,1]")
    A(f"v_pk_mul_f32 {pr(24)}, {pr(32)}, {pr(32)}")
    for p in range(1, 4):
        A(f"v_pk_fma_f32 {pr(24)}, {pr(32+2*p)}, {pr(32+2*p)}, {pr(24)}")
    A("v_add_f32 v24, v24, v25\nv_cndmask_b32 v24, 0, v24, vcc")
    wave_sum_to_sgpr(24, 48)
    A("v_mul_f32 v24, s48, v30")
    A("v_cvt_pk_bf16_f32 v25, v46, v24\nv_lshlrev_b32 v46, 16, v25\nv_and_b32 v24, 0xffff0000, v25")
    A(f"v_add_f32 v24, {f32(1e-5)}, v24")
    round_bf16(24, 25)
    A("v_sqrt_f32 v24, v24")
    round_bf16(24, 25)
    A("v_rcp_f32 v28, v24")
    A(f"s_waitcnt vmcnt({0 if notile else 14})")
    for p in range(7):
        A(f"v_lshlrev_b32 v{32+2*p}, 16, v{XP+p}\nv_and_b32 v{33+2*p}, 0xffff0000, v{XP+p}")
    for p in range(7):
        A(f"v_pk_add_f32 {pr(32+2*p)}, {pr(32+2*p)}, {pr(46)} op_sel_hi:[1,0] neg_lo:[0,1] neg_hi:[0,1]")
    for p in range(7):
        A(f"v_cvt_pk_bf16_f32 v{XP+p}, v{32+2*p}, v{33+2*p}")
    for p in range(7):
        A(f"v_lshlrev_b32 v{32+2*p}, 16, v{XP+p}\nv_and_b32 v{33+2*p}, 0xffff0000, v{XP+p}")
    for p in range(7):
        A(f"v_pk_mul_f32 {pr(46+2*p)}, {pr(32+2*p)}, {pr(28)} op_sel_hi:[1,0]")
    for p in range(7):
        A(f"v_pk_fma_f32 {pr(32+2*p)}, {pr(46+2*p)}, {pr(24)}, {pr(32+2*p)} op_sel_hi:[1,0,1] neg_lo:[1,0,0] neg_hi:[1,0,0]")
    for p in range(7):
        A(f"v_pk_fma_f32 {pr(46+2*p)}, {pr(32+2*p)}, {pr(28)}, {pr(46+2*p)} op_sel_hi:[1,0,1]")
    for p in range(7):
        A(f"v_cvt_pk_bf16_f32 v{XP+p}, v{46+2*p}, v{47+2*p}")
    for i in range(8):
        A(f"v_mov_b32 v{32+i}, 0")
    for u in range(7):
        if not notile: A(f"s_waitcnt vmcnt({14 - (2*u + 2)})")
        ra = WB + 8 * u; rb = ra + 4
        for q in range(4):
            A(f"v_perm_b32 v{40+2*q}, v{rb+q}, v{ra+q}, s20\nv_perm_b32 v{41+2*q}, v{rb+q}, v{ra+q}, s21")
        for q in range(8):
            A(f"v_dot2c_f32_bf16 v{32+q}, v{40+q}, v{XP+u}")
    for i in range(4):
        A(f"v_permlane32_swap_b32 v{32+i}, v{36+i}")
    A(f"v_pk_add_f32 {pr(32)}, {pr(32)}, {pr(36)}\nv_pk_add_f32 {pr(34)}, {pr(34)}, {pr(38)}")
    for i in range(4):
        A(f"v_add_f32_dpp v{32+i}, v{32+i}, v{32+i} row_ror:8 {DPPM}")
    for i in range(4):
        A(f"v_mov_b32 v{36+i}, v{32+i}")
    for i in range(4):
        A(f"v_permlane16_swap_b32 v{32+i}, v{36+i}")
    A(f"v_pk_add_f32 {pr(32)}, {pr(32)}, {pr(36)}\nv_pk_add_f32 {pr(34)}, {pr(34)}, {pr(38)}")
    for i in range(4):
        A(f"v_perm_b32 v{32+i}, v{32+i}, v12, s{12+i}")
    A("buffer_store_dwordx4 v[32:35], v10, s[8:11], 0 offen sc1")
    stamp(1)
    A.label("L_aux_bq1")
    A("s_barrier")
    for i in range(32):
        A(f"v_mov_b32 v{128+i}, 0")
    A(f"s_lshl_b32 s7, s3, 8\nv_lshlrev_b32 v14, 2, v0\nv_add_u32 v14, s7, v14")
    A(f"v_mov_b32 v26, {F_MIX}\nv_mov_b32 v27, 1")
    GB = 24

    def gather64(label, base):
        A.label(label)
        for i in range(4):
            A(f"s_load_dwordx16 s[{GB+16*i}:{GB+16*i+15}], {base}, {64*i} glc")
        A("s_add_u32 s23, s23, 1")
        A(f"s_cmp_gt_u32 s23, {spin_max}\ns_cbranch_scc1 L_end")
        A("s_waitcnt lgkmcnt(0)")
        for i in range(64):
            A(f"v_writelane_b32 v13, s{GB+i}, {i}")
        A("v_and_b32 v11, 0xff, v13\nv_cmp_ne_u32 vcc, v11, v60")
        A(f"s_cbranch_vccnz {label}")

    A("s_cmp_lg_u32 s3, 1\ns_cbranch_scc1 L_aux_bq2")
    A(f"s_lshl_b32 s7, s16, 8\ns_add_u32 s7, s7, {WS_P1}\ns_add_u32 s0, s8, s7\ns_addc_u32 s1, s9, 0")
    A(f"s_lshl_b32 s7, s4, 16\ns_add_u32 s7, s7, {WS_Q}\nv_lshlrev_b32 v10, 2, v3\nv_and_b32 v11, 3, v0\nv_add_u32 v10, v10, v11\nv_lshlrev_b32 v10, 11, v10\nv_bfe_u32 v11, v0, 2, 2\nv_lshl_add_u32 v10, v11, 4, v10\nv_add_u32 v10, s7, v10\ns_lshl_b32 s7, s5, 6\nv_add_u32 v10, s7, v10")
    A("v_mov_b32 v33, s17\nv_mov_b32 v35, s17")
    gather64("L_aux_g1", "s[0:1]")
    swapadd(16, 13, 11)
    swapadd(32, 13, 11)
    A(f"v_mov_b32_dpp v11, v13 quad_perm:[1,1,3,3] {DPPM}")
    A("v_cvt_pk_bf16_f32 v13, v13, v11")
    A(f"v_mov_b32_dpp v32, v13 quad_perm:[0,0,0,0] {DPPM}\nv_mov_b32_dpp v34, v13 quad_perm:[2,2,2,2] {DPPM}")
    A("s_mov_b32 s7, 0x8000")
    A("buffer_store_dwordx4 v[32:35], v10, s[8:11], 0 offen sc1")
    A("buffer_store_dwordx4 v[32:35], v10, s[8:11], s7 offen sc1")
    stamp(2)
    A.label("L_aux_bq2")
    A("s_barrier")
    A("s_mov_b32 s1, 0")
    for rnd in range(2):
        A("s_mov_b32 s0, 15")
        A.label(f"L_aux_q{rnd}")
        for i in range(4):
            A(f"s_bitcmp1_b32 s0, {i}\ns_cbranch_scc0 L_aux_qs{rnd}{i}")
            A(f"s_load_dwordx16 s[{GB+16*i}:{GB+16*i+15}], s[18:19], {64*(4*rnd+i)} glc")
            A.label(f"L_aux_qs{rnd}{i}")
        A("s_add_u32 s23, s23, 1")
        A(f"s_cmp_gt_u32 s23, {spin_max}\ns_cbranch_scc1 L_end")
        A("s_mov_b32 s0, 0")
        A("s_waitcnt lgkmcnt(0)")
        for i in range(4):
            b = GB + 16 * i
            A(f"s_add_u32 s7, s{b+1}, s{b+3}")
            for t in range(2, 8):
                A(f"s_add_u32 s7, s7, s{b+1+2*t}")
            A(f"s_cmp_lg_u32 s7, s22\ns_cselect_b32 s7, {1 << i}, 0\ns_or_b32 s0, s0, s7")
        if gsleep:
            A(f"s_cbranch_scc0 L_aux_qd{rnd}\ns_sleep {gsleep}\ns_branch L_aux_q{rnd}")
            A.label(f"L_aux_qd{rnd}")
        else:
            A(f"s_cbranch_scc1 L_aux_q{rnd}")
        for i in range(32):
            A(f"v_writelane_b32 v13, s{GB+2*i}, {32*rnd+i}")
        for i in range(4):
            A(f"s_xor_b32 s7, s{GB+16*i+1}, s17\ns_or_b32 s1, s1, s7")
    A(f"ds_write_b32 v14, v13 offset:{L_Q}")
    if force_mix: A("s_mov_b32 s1, 1")
    A("s_cmp_eq_u32 s1, 0\ns_cbranch_scc1 L_aux_nomix")
    A("ds_write_b32 v26, v27")
    A.label("L_aux_nomix")
    stamp(3)
    A(f"s_lshl_b32 s7, s16, 12\ns_add_u32 s7, s7, {WS_H1}\nv_and_b32 v15, 1, v0")
    A("v_lshrrev_b32 v5, 1, v0\nv_lshlrev_b32 v5, 7, v5\nv_add_u32 v5, s7, v5\nv_lshl_add_u32 v4, v15, 5, v5")
    A(f"v_lshlrev_b32 v10, 4, v15\nv_lshl_add_u32 v10, v3, 2, v10\nv_add_u32 v10, {L_AT}, v10")
    A("s_mov_b32 s25, 0xffff\ns_cmp_eq_u32 s3, 3\ns_cselect_b32 s24, 0x00ff00ff, -1\ns_cselect_b32 s25, 0xff, s25")
    A("s_waitcnt lgkmcnt(0)")
    A("s_barrier")
    stamp(4)
    A("ds_read_b32 v29, v26")
    OW = 128
    A("s_mov_b64 exec, s[24:25]")
    for e in range(0 if nowo else 8):
        A(f"global_load_dwordx4 v[{OW+4*e}:{OW+4*e+3}], v[6:7], off offset:{896*e - 3584}{wflag}")
    A("s_mov_b64 exec, -1")
    if warm1:
        A("s_cmp_lg_u32 s3, 3\ns_cbranch_scc1 L_aux_nowarm")
        A("buffer_load_dwordx4 v[160:163], v4, s[8:11], 0 offen sc1")
        A("buffer_load_dwordx4 v[164:167], v5, s[8:11], 0 offen offset:64 sc1")
        A.label("L_aux_nowarm")
    stamp(5)
    A("s_waitcnt lgkmcnt(0)")
    A("v_readfirstlane_b32 s1, v29")
    A("s_cmp_lg_u32 s3, 0\ns_cbranch_scc1 L_aux_perm")
    A("v_mov_b32 v32, 0")
    A("s_cmp_gt_u32 s5, 27\ns_cbranch_scc1 L_aux_hw")
    A(f"s_mul_i32 s7, s4, 28\ns_add_u32 s7, s7, s5\ns_lshl_b32 s7, s7, 8\ns_add_u32 s7, s7, {WS_PF}\ns_add_u32 s18, s8, s7\ns_addc_u32 s19, s9, 0")
    gather64("L_aux_gf", "s[18:19]")
    A(f"v_add_f32_dpp v13, v13, v13 row_ror:8 {DPPM}")
    swapadd(16, 13, 11)
    A("v_mov_b32 v11, v13\nv_permlane32_swap_b32 v13, v11")
    A("v_cvt_pk_bf16_f32 v34, v13, v11\nv_lshlrev_b32 v32, 16, v34\nv_and_b32 v33, 0xffff0000, v34")
    A(f"v_mul_f32 v34, {f32(-LOG2E)}, v32\nv_exp_f32 v34, v34\nv_add_f32 v34, 1.0, v34\nv_rcp_f32 v34, v34\nv_mul_f32 v32, v32, v34")
    round_bf16(32, 34)
    A("v_mul_f32 v32, v32, v33")
    A(f"v_mov_b32_dpp v33, v32 quad_perm:[1,1,3,3] {DPPM}")
    A("v_cvt_pk_bf16_f32 v32, v32, v33")
    A.label("L_aux_hw")
    A(f"v_lshlrev_b32 v33, 1, v0\nv_add_u32 v33, {L_AT + 96}, v33\nv_mov_b32 v26, {F_H}")
    A("s_mov_b64 exec, 0x55")
    A("ds_write_b32 v33, v32")
    A("s_mov_b64 exec, 1\nds_write_b32 v26, v27\ns_mov_b64 exec, -1")
    stamp(6)
    A.label("L_aux_perm")
    A(f"s_mov_b32 s58, 0x0c0c0400\ns_mov_b32 s59, 0x04000c0c\ns_mov_b32 s62, {f32(LOG2E/16)}\ns_mul_i32 s64, s6, 3\ns_mov_b64 s[66:67], -1")
    A("s_mov_b32 s68, 0xaaaaaaaa\ns_mov_b32 s69, 0xaaaaaaaa\ns_mov_b32 s48, 0\ns_mov_b32 s49, -1")
    if stamps: A("s_mov_b32 s72, 0\ns_mov_b32 s74, 0")
    FB2 = 64
    A("s_waitcnt vmcnt(0)")
    for p in range(4):
        ra = OW + 8 * p; rb = ra + 4
        for q in range(4):
            A(f"v_perm_b32 v{FB2 + 4*(2*q) + p}, v{rb+q}, v{ra+q}, s20")
            A(f"v_perm_b32 v{FB2 + 4*(2*q+1) + p}, v{rb+q}, v{ra+q}, s21")
    stamp(7)
    if h1p < 4: A(f"s_cmp_lt_u32 s3, {4-h1p}\ns_cbranch_scc1 L_aux_h1done")
    A(f"v_mov_b32 v26, {F_ST}")
    lds_wait("L_aux_wst", "s_cmp_lt_u32 s7, 4", cnt="s23", tmp="v28", addr="v26")
    A(f"v_mov_b32 v26, {F_O}")
    stamp(8)
    if stagger1:
        A("s_sub_u32 s7, 3, s3")
        A.label("L_aux_stg")
        A("s_cmp_eq_u32 s7, 0\ns_cbranch_scc1 L_aux_p1")
        A(f"s_sleep {stagger1}\ns_sub_u32 s7, s7, 1\ns_branch L_aux_stg")
    A.label("L_aux_p1")
    P = 128
    A("s_mov_b64 exec, s[66:67]")
    A(f"buffer_load_dwordx4 v[{P}:{P+3}], v4, s[8:11], 0 offen sc1")
    A(f"buffer_load_dwordx4 v[{P+4}:{P+7}], v4, s[8:11], 0 offen offset:16 sc1")
    A(f"buffer_load_dwordx4 v[{P+8}:{P+11}], v5, s[8:11], 0 offen offset:64 sc1")
    A("ds_read_b32 v28, v26")
    A("s_add_u32 s23, s23, 1")
    A("s_waitcnt lgkmcnt(0)")
    A("v_readfirstlane_b32 s7, v28")
    A("s_cmp_lg_u32 s7, 0\ns_cbranch_scc1 L_aux_h1done")
    A(f"s_cmp_gt_u32 s23, {spin_max}\ns_cbranch_scc1 L_end")
    A("s_waitcnt vmcnt(0)")
    T = P + 12
    for k in range(3):
        r = P + 4 * k
        A(f"v_perm_b32 v{T+2*k}, v{r+1}, v{r}, s58\nv_perm_b32 v{T+1+2*k}, v{r+3}, v{r+2}, s59")
    A(f"v_add3_u32 v{T}, v{T}, v{T+1}, v{T+2}\nv_add3_u32 v{T+3}, v{T+3}, v{T+4}, v{T+5}\nv_add_u32 v{T}, v{T}, v{T+3}")
    A(f"v_cmp_ne_u32 s[66:67], s64, v{T}")
    A("s_cmp_lg_u64 s[66:67], 0")
    if h1sleep:
        A(f"s_cbranch_scc0 L_aux_p1d\ns_sleep {h1sleep}\ns_branch L_aux_p1")
        A.label("L_aux_p1d")
    else:
        A("s_cbranch_scc1 L_aux_p1")
    A("s_mov_b64 exec, -1")
    stamp(9)
    M_, L_, X_, Y_ = T + 1, T + 2, T + 3, T + 4
    A(f"v_cndmask_b32 v{M_}, v{P+8}, v{P+10}, s[68:69]\nv_cndmask_b32 v{L_}, v{P+9}, v{P+11}, s[68:69]")
    A(f"v_and_b32 v{M_}, 0xffff0000, v{M_}")
    A(f"v_max_f32_dpp v{X_}, v{M_}, v{M_} quad_perm:[2,3,0,1] {DPPM}")
    A(f"v_max_f32_dpp v{X_}, v{X_}, v{X_} row_ror:4 {DPPM}")
    A(f"v_max_f32_dpp v{X_}, v{X_}, v{X_} row_ror:8 {DPPM}")
    swapadd(16, X_, Y_, "max")
    swapadd(32, X_, Y_, "max")
    A(f"v_sub_f32 v{M_}, v{M_}, v{X_}\nv_mul_f32 v{M_}, s62, v{M_}\nv_exp_f32 v{M_}, v{M_}")
    A(f"v_mul_f32 v{L_}, v{L_}, v{M_}")
    for i in range(8):
        A(f"v_mul_f32 v{P+i}, v{P+i}, v{M_}")
    A(f"v_add_f32_dpp v{L_}, v{L_}, v{L_} quad_perm:[2,3,0,1] {DPPM}")
    for i in range(4):
        A(f"v_permlane32_swap_b32 v{P+i}, v{P+4+i}")
    A(f"v_add_f32_dpp v{L_}, v{L_}, v{L_} row_ror:4 {DPPM}")
    A(f"v_pk_add_f32 {pr(P)}, {pr(P)}, {pr(P+4)}\nv_pk_add_f32 {pr(P+2)}, {pr(P+2)}, {pr(P+6)}")
    A(f"v_add_f32_dpp v{L_}, v{L_}, v{L_} row_ror:8 {DPPM}")
    A(f"v_permlane16_swap_b32 v{P}, v{P+2}\nv_permlane16_swap_b32 v{P+1}, v{P+3}")
    A(f"v_mov_b32 v{Y_}, v{L_}")
    A(f"v_pk_add_f32 {pr(P)}, {pr(P)}, {pr(P+2)}")
    A(f"v_permlane16_swap_b32 v{L_}, v{Y_}\nv_add_f32 v{L_}, v{L_}, v{Y_}")
    for mod in ("quad_perm:[2,3,0,1]", "row_ror:4", "row_ror:8"):
        A(f"v_add_f32_dpp v{P}, v{P}, v{P} {mod} {DPPM}")
        A(f"v_add_f32_dpp v{P+1}, v{P+1}, v{P+1} {mod} {DPPM}")
        if mod == "quad_perm:[2,3,0,1]":
            swapadd(32, L_, Y_)
            A(f"v_rcp_f32 v{L_}, v{L_}")
    A(f"v_mul_f32 v{P}, v{P}, v{L_}\nv_mul_f32 v{P+1}, v{P+1}, v{L_}\nv_cvt_pk_bf16_f32 v{P}, v{P}, v{P+1}")
    A("s_mov_b32 s66, 0x00030003\ns_mov_b32 s67, 0x00030003\ns_mov_b64 exec, s[66:67]")
    A(f"ds_write_b32 v10, v{P}")
    A("s_mov_b64 exec, 1")
    A("ds_write_b32 v26, v27")
    A.label("L_aux_h1done")
    A("s_mov_b64 exec, -1")
    A(f"v_mov_b32 v26, {F_O}")
    A.label("L_aux_w3")
    A("ds_read_b64 v[24:25], v26")
    A("ds_read_b128 v[28:31], v9")
    A("s_add_u32 s23, s23, 1")
    A("s_waitcnt lgkmcnt(0)")
    A("v_and_b32 v24, v24, v25")
    A("v_readfirstlane_b32 s7, v24")
    A(f"s_cmp_gt_u32 s23, {spin_max}\ns_cbranch_scc1 L_end")
    A("s_cmp_eq_u32 s7, 0\ns_cbranch_scc1 L_aux_w3")
    stamp(10)
    for i in range(8):
        A(f"v_mfma_f32_16x16x32_bf16 v[{96+4*i}:{99+4*i}], v[28:31], v[{FB2+4*i}:{FB2+4*i+3}], 0")
    for k in range(4):
        A(f"v_cndmask_b32 v{32+k}, v{96+4*k}, v{112+4*k}, s[48:49]")
    for k in range(4):
        A(f"v_perm_b32 v{32+k}, v{32+k}, v12, s{12+k}")
    if fast2:
        A("s_cmp_lg_u32 s1, 0\ns_cbranch_scc1 L_aux_st1")
        A("buffer_store_dwordx4 v[32:35], v61, s[8:11], 0 offen sc1")
        A("buffer_store_dwordx4 v[32:35], v62, s[8:11], 0 offen")
        A("s_branch L_aux_st2")
        A.label("L_aux_st1")
    A("buffer_store_dwordx4 v[32:35], v8, s[8:11], 0 offen sc1")
    A.label("L_aux_st2")
    A(f"v_mov_b32 v26, {F_PUB}")
    A("s_mov_b64 exec, 1\nds_add_u32 v26, v27\ns_mov_b64 exec, -1")
    stamp(11)
    if stamps:
        A("s_add_u32 s3, s3, 4")
    stamps_out(range(12), 63, "s3")
    A.label("L_end")
    A("s_endpgm")
    A.raw('.section .rodata,"a"\n.p2align 6')
    A.raw(f".amdhsa_kernel {KNAME}\n  .amdhsa_next_free_vgpr 192\n  .amdhsa_next_free_sgpr 102\n  .amdhsa_accum_offset 192\n  .amdhsa_group_segment_fixed_size 0\n  .amdhsa_kernarg_size 96\n  .amdhsa_user_sgpr_count 2\n  .amdhsa_user_sgpr_kernarg_segment_ptr 1\n  .amdhsa_system_sgpr_workgroup_id_x 1\n.end_amdhsa_kernel")
    return E.text()

if __name__ == "__main__":
    out = sys.argv[1] if len(sys.argv) > 1 else "recurrent_scan__sliding_block_cached__swiglu_ffn__decode.s"
    kw = {}
    for a in sys.argv[2:]:
        k, v = a.split("=", 1)
        kw[k] = eval(v)
    open(out, "w").write(gen(**kw))
```

```python
import sys
sys.path.insert(0, "dev")
from emit import Emitter
import struct

KNAME = "recurrent_scan__sliding_block_cached__swiglu_ffn__decode_kernel"
HEADER = open("recurrent_scan__sliding_block_cached__swiglu_ffn__decode.s.ref").read().split("; Override launch geometry")[0]

WS_P1    = 0x10000
WS_PF    = 0x20000
WS_Q     = 0x80000
WS_H1    = 0x100000
WS_H2    = 0x200000
WS_P1S   = 0x30000
WS_QS    = 0x300000
WS_DBG   = 0x400000
WS_SIZE  = 0x1000000
OOB      = 0x7ffffff0
L_Q, L_S, L_AT, L_F = 0x000, 0x400, 0xC00, 0xC80
F_SC, F_MIX, F_O, F_H, F_PUB, F_ST, F_VI, F_QP, F_P = L_F, L_F + 4, L_F + 8, L_F + 12, L_F + 16, L_F + 20, L_F + 24, L_F + 28, L_F + 32
LOG2E = 1.4426950408889634
def f32(x): return "0x%08x" % struct.unpack("<I", struct.pack("<f", x))[0]
DPPM = "row_mask:0xf bank_mask:0xf"
def pr(i): return f"v[{i}:{i+1}]"

def gen(stamps=False, wflag=" nt", tflag=" nt", stagger1=2, stagger2=3, spin_max=1 << 18, n1=16, n2=8, kvprio=2, auxprio=3,
        gsleep=0, h1sleep=0, h2sleep=0, nowo=False, kdelay=0, nokv=False, notile=False, h1p=4, h2p=4, fast1=True, fast2=True,
        warm1=True, force_mix=False, kp=0, vp=0, nv1=16, nv2=0, qpsleep=1, visleep=1, fastq=False, tfast=64, gate=True, ffn_first=False, warm0=False, warm0h1=True, warm0h2=True, wfirst=False, gate1=False, probe=0, psleep=8, ackp=False, pf=0, pfall=False, roll=False, swarm=False, wovi=-1, wbl=0, noslow=False, qst="sc1", h2st="sc1", h2ld="sc1", kvg=True, kvsplit=(8,)):
    qst, h2st, h2ld = (x.replace('_', ' ') for x in (qst, h2st, h2ld))
    E = Emitter()
    A = E
    def spair(i):
        return 88 + 2 * i if i < 7 else 70 + 2 * (i - 7)
    def stamp(i):
        if stamps:
            p = spair(i)
            A(f"s_memrealtime s[{p}:{p+1}]")
    def stamps_out(idx, vreg, wave_s):
        if not stamps: return
        A("s_waitcnt lgkmcnt(0)")
        for i in idx:
            A(f"v_writelane_b32 v{vreg}, s{spair(i)}, {i}")
        A(f"s_lshl_b32 s7, s2, 10\ns_lshl_b32 s40, {wave_s}, 6\ns_add_u32 s7, s7, s40\ns_add_u32 s7, s7, {WS_DBG}")
        A(f"v_lshlrev_b32 v1, 2, v0\nv_add_u32 v1, s7, v1\nv_cmp_gt_u32 vcc, 16, v0\nv_mov_b32 v2, {OOB}\nv_cndmask_b32 v1, v2, v1, vcc")
        A(f"buffer_store_dword v{vreg}, v1, s[8:11], 0 offen")

    def allreduce16(regs, op="add"):
        for mod in ("quad_perm:[1,0,3,2]", "quad_perm:[2,3,0,1]", "row_ror:4", "row_ror:8"):
            for r in regs:
                A(f"v_{op}_f32_dpp v{r}, v{r}, v{r} {mod} {DPPM}")

    def wave_sum_to_sgpr(r, s):
        allreduce16([r])
        A(f"v_add_f32_dpp v{r}, v{r}, v{r} row_bcast:15 row_mask:0xa bank_mask:0xf")
        A(f"v_add_f32_dpp v{r}, v{r}, v{r} row_bcast:31 row_mask:0xc bank_mask:0xf")
        A(f"v_readlane_b32 s{s}, v{r}, 63")

    def round_bf16(r, t):
        A(f"v_cvt_pk_bf16_f32 v{t}, v{r}, v{r}")
        A(f"v_and_b32 v{r}, 0xffff0000, v{t}")

    def swapadd(kind, r, t, op="add"):
        A(f"v_mov_b32 v{t}, v{r}\nv_permlane{kind}_swap_b32 v{r}, v{t}\nv_{op}_f32 v{r}, v{r}, v{t}")

    def lds_wait(label, cmp, cnt="s63", tmp="v26", addr="v24", sleep=0):
        if sleep:
            A(f"s_branch {label}_e")
            A.label(label)
            A(f"s_sleep {sleep}")
            A.label(label + "_e")
        else:
            A.label(label)
        A(f"ds_read_b32 {tmp}, {addr}")
        A(f"s_add_u32 {cnt}, {cnt}, 1")
        A("s_waitcnt lgkmcnt(0)")
        A(f"v_readfirstlane_b32 s7, {tmp}")
        A(f"s_cmp_gt_u32 {cnt}, {spin_max}\ns_cbranch_scc1 L_end")
        A(f"{cmp}\ns_cbranch_scc1 {label}")

    def epoch():
        A("s_mul_i32 s6, s6, 1664525\ns_add_u32 s6, s6, 1013904223")
        A("v_mov_b32 v12, s6")

    A.raw(HEADER.rstrip())
    A.raw("; @launch grid=(256,1,1) block=(512,1,1) lds=4096")
    A.raw('.amdgcn_target "amdgcn-amd-amdhsa--gfx950"')
    A.raw(".text")
    A.raw(f".globl {KNAME}\n.p2align 8\n.type {KNAME},@function\n{KNAME}:")
    A("s_cmp_ge_u32 s2, 256")
    A("s_cbranch_scc1 L_end")
    A("s_load_dwordx16 s[16:31], s[0:1], 0")
    A("s_load_dwordx8 s[32:39], s[0:1], 64")
    stamp(0)
    A("v_lshrrev_b32 v1, 6, v0")
    A("v_and_b32 v0, 63, v0")
    A("v_readfirstlane_b32 s3, v1")
    A("s_and_b32 s4, s2, 7")
    A("s_lshr_b32 s5, s2, 3")
    A("v_and_b32 v2, 15, v0")
    A("v_lshrrev_b32 v3, 4, v0")
    A("s_cmp_lt_u32 s3, 4")
    A("s_cbranch_scc1 L_kv")

    WB = 64
    XP = 16
    A(f"s_setprio {auxprio}")
    A("s_sub_u32 s3, s3, 4")
    A("s_mul_i32 s61, s4, 28\ns_min_u32 s7, s5, 27\ns_add_u32 s61, s61, s7")
    A("s_cmp_gt_u32 s3, 1\ns_cbranch_scc1 " + ("L_aux_warm" if warm0 else "L_aux_b0"))
    A("s_lshl_b32 s44, s4, 3\ns_lshr_b32 s45, s5, 2\ns_add_u32 s44, s44, s45")
    A("s_lshr_b32 s45, s61, 3")
    A("s_movk_i32 s48, 3584\ns_mov_b32 s46, 1605632")
    A("s_cmp_eq_u32 s3, 1")
    A("s_cselect_b32 s62, s5, s61\ns_cselect_b32 s63, s44, s45\ns_cselect_b32 s48, 0x2000, s48\ns_cselect_b32 s46, 3670016, s46")
    A("s_and_b32 s62, s62, 3")
    A("s_mul_i32 s7, s62, 112\ns_mul_i32 s44, s7, s48\ns_lshl_b32 s45, s63, 7\ns_add_u32 s44, s44, s45\ns_sub_u32 s46, s46, s44")
    A("s_lshl_b32 s7, s7, 1\ns_mul_i32 s45, s48, 14")
    A("v_and_b32 v14, 7, v0\nv_lshrrev_b32 v15, 3, v0")
    A("v_mul_u32_u24 v5, s45, v15\nv_lshl_add_u32 v5, v14, 4, v5")
    A("v_mul_u32_u24 v4, 28, v15\nv_add_u32 v4, s7, v4\nv_lshlrev_b32 v1, 4, v0")
    for k in range(2, 14):
        A(f"s_add_u32 s{47+k}, s{46+k}, s48")
    A("s_mov_b32 s42, 896\ns_mov_b32 s43, 0x20000\ns_mov_b32 s47, 0x20000")
    A("s_bitcmp1_b32 s61, 2")
    A("s_waitcnt lgkmcnt(0)")
    A("s_cselect_b64 s[28:29], s[30:31], s[28:29]")
    A("s_cmp_eq_u32 s3, 1")
    A("s_cselect_b64 s[28:29], s[22:23], s[28:29]")
    A("s_mov_b32 s40, s16\ns_mov_b32 s41, s17")
    A("s_add_u32 s44, s28, s44\ns_addc_u32 s45, s29, 0")
    A("s_lshl_b32 s7, s3, 5\ns_sub_u32 s7, s5, s7\ns_cmp_gt_i32 s7, 27\ns_cbranch_scc1 " + ("L_aux_pf" if pf else "L_aux_b0"))
    A("buffer_load_dwordx4 v[24:27], v1, s[40:43], 0 offen")
    A(f"buffer_load_dwordx4 v[{XP}:{XP+3}], v4, s[40:43], 0 offen")
    A(f"buffer_load_dwordx3 v[{XP+4}:{XP+6}], v4, s[40:43], 0 offen offset:16")
    for k in range(0 if notile else 14):
        r = WB + 4 * k
        A(f"buffer_load_dwordx4 v[{r}:{r+3}], v5, s[44:47], {('s%d' % (47+k)) if k else '0'} offen{tflag}")
    A.label("L_aux_b0")
    A("s_barrier")
    A("s_branch L_aux")
    if pf:
        A.label("L_aux_pf")
        A("s_getpc_b64 s[44:45]")
        A.label("L_aux_pf1")
        A(f"s_sub_u32 s44, s44, L_aux_pf1-{KNAME}\ns_subb_u32 s45, s45, 0")
        A(f"s_and_b32 s46, s5, 3\ns_lshl_b32 s46, s46, 7\ns_mov_b32 s47, L_end-{KNAME}")
        for i in range(pf):
            A(f"s_load_dword s{48 + (i & 7)}, s[44:45], s46\ns_add_u32 s46, s46, 512\ns_min_u32 s46, s46, s47")
        A("s_branch L_aux_b0")
    if warm0:
        A.label("L_aux_warm")
        A("s_lshl_b32 s16, s4, 5\ns_add_u32 s16, s16, s5")
        A(f"s_lshl_b32 s44, s16, 11\ns_add_u32 s44, s44, {WS_Q}")
        A(f"s_lshl_b32 s45, s16, 8\ns_add_u32 s45, s45, {WS_P1 - 2048}")
        A(f"s_lshl_b32 s46, s16, 12\ns_add_u32 s46, s46, {WS_H1 - 4096}")
        if not warm0h1: A(f"s_mov_b32 s46, {OOB}")
        A(f"s_lshl_b32 s47, s2, 13\ns_lshl_b32 s7, s4, 10\ns_add_u32 s47, s47, s7\ns_add_u32 s47, s47, {WS_H2}")
        A(f"s_cmp_ge_u32 s2, {112 if warm0h2 else 0}\ns_cselect_b32 s47, {OOB}, s47")
        A(f"s_cmp_eq_u32 s3, 3\ns_cselect_b32 s44, s47, s44\ns_cselect_b32 s45, {OOB}, s45\ns_cselect_b32 s46, {OOB}, s46\ns_cselect_b32 s7, 8, 16")
        A(f"v_mov_b32 v5, s46\nv_mov_b32 v6, {OOB}\nv_cmp_gt_u32 vcc, 32, v0\nv_cndmask_b32 v5, v5, v6, vcc")
        A("v_mov_b32 v6, s45\nv_cmp_gt_u32 vcc, 18, v0\nv_cndmask_b32 v5, v5, v6, vcc")
        A("v_mov_b32 v6, s44\nv_cmp_gt_u32 vcc, s7, v0\nv_cndmask_b32 v5, v5, v6, vcc")
        A("v_lshl_add_u32 v5, v0, 7, v5")
        A(f"s_mov_b32 s10, {WS_SIZE}\ns_mov_b32 s11, 0x20000")
        A("s_waitcnt lgkmcnt(0)")
        A("s_mov_b32 s8, s38\ns_mov_b32 s9, s39")
        A("buffer_load_dword v168, v5, s[8:11], 0 offen sc1")
        A("s_branch L_aux_b0")

    A.label("L_kv")
    KB, VB = 64, 128
    A("s_lshl_b32 s6, s4, 25\ns_add_u32 s6, s6, 0x1e00000\ns_lshl_b32 s7, s5, 16\ns_add_u32 s6, s6, s7")
    A("v_and_b32 v4, 7, v2\nv_lshlrev_b32 v4, 9, v4\nv_lshrrev_b32 v5, 3, v2\nv_lshl_add_u32 v4, v5, 6, v4\nv_lshl_add_u32 v4, v3, 4, v4")
    A("s_lshl_b32 s7, s3, 14\nv_add_u32 v4, s7, v4")
    A("v_and_b32 v6, 7, v2\nv_lshlrev_b32 v6, 4, v6\nv_lshl_add_u32 v6, v5, 14, v6\nv_lshl_add_u32 v6, v3, 12, v6")
    A("s_lshl_b32 s7, s3, 7\nv_add_u32 v6, s7, v6")
    A("s_mov_b32 s48, 0x1000\ns_mov_b32 s49, 0x2000\ns_mov_b32 s50, 0x3000\ns_mov_b32 s51, 0x8000")
    A("s_mov_b32 s42, 0x10000\ns_mov_b32 s43, 0x20000\ns_mov_b32 s46, 0x10000\ns_mov_b32 s47, 0x20000")
    A(f"s_mov_b32 s10, {WS_SIZE}\ns_mov_b32 s11, 0x20000")
    A("s_lshl_b32 s7, s2, 3\nv_lshlrev_b32 v27, 1, v3\nv_add_u32 v27, s7, v27")
    A("v_mov_b32 v8, 0\nv_mov_b32 v9, 0\nv_mov_b32 v10, 0\nv_mov_b32 v11, 0")
    if stamps: A("v_mov_b32 v31, 0")
    A(f"v_lshlrev_b32 v7, 4, v2\nv_add_u32 v7, {L_AT}, v7")
    A("s_cmp_lg_u32 s3, 0\ns_cbranch_scc1 L_kv_noz")
    A("ds_write_b128 v7, v[8:11]")
    A.label("L_kv_noz")
    A("s_waitcnt lgkmcnt(0)")
    A("s_add_u32 s40, s18, s6\ns_addc_u32 s41, s19, 0")
    A("s_add_u32 s44, s20, s6\ns_addc_u32 s45, s21, 0")
    A("s_mov_b32 s8, s38\ns_mov_b32 s9, s39")
    A("s_load_dword s6, s[38:39], 0")
    A("s_mov_b32 s18, 896\ns_mov_b32 s19, 0x20000")
    A("s_mov_b32 s32, s34\ns_mov_b32 s33, s35\ns_mov_b32 s34, 896\ns_mov_b32 s35, 0x20000")
    A("buffer_load_ushort v28, v27, s[16:19], 0 offen")
    A("s_barrier")
    if kdelay: A(f"s_sleep {kdelay}")
    so = ["0", "s48", "s49", "s50"]
    loads = []
    for tau in range(4):
        for t in range(4):
            r = KB + 16 * tau + 4 * t
            loads.append(f"buffer_load_dwordx4 v[{r}:{r+3}], v4, s[40:43], {so[tau]} offen offset:{128*t} nt")
    for sg in range(2):
        for e in range(8):
            r = VB + 32 * sg + 4 * e
            loads.append(f"buffer_load_dwordx4 v[{r}:{r+3}], v6, {'s[16:19]' if kvg else 's[44:47]'}, {'0' if sg == 0 else ('s14' if kvg else 's51')} offen offset:{512*e} nt")
    if nokv: loads = []
    st = dict(n=1, i=0)
    def issue(upto, k):
        while st["i"] < min(upto, len(loads)):
            if k and st["n"] >= k: A(f"s_waitcnt vmcnt({k-1})")
            A(loads[st["i"]]); st["i"] += 1; st["n"] += 1
    issue(min(n1, max(kp - 1, 1)) if kp else n1, kp)
    A("s_waitcnt lgkmcnt(0)")
    epoch()
    A("s_mov_b32 s52, 0x07060500\ns_mov_b32 s53, 0x07060501\ns_mov_b32 s54, 0x07060502\ns_mov_b32 s55, 0x07060503")
    A("s_mov_b32 s56, 0x05040100\ns_mov_b32 s57, 0x07060302")
    A("s_mov_b32 s58, 0x0c0c0400\ns_mov_b32 s59, 0x04000c0c")
    A("v_and_b32 v13, 1, v2\nv_lshlrev_b32 v13, 9, v13\nv_bfe_u32 v14, v2, 1, 1\nv_lshl_add_u32 v13, v14, 6, v13\nv_lshl_add_u32 v13, v3, 4, v13")
    A("v_lshrrev_b32 v16, 1, v3")
    A("v_lshlrev_b32 v15, 10, v16\nv_and_b32 v17, 1, v2\nv_lshl_add_u32 v15, v17, 9, v15\nv_and_b32 v17, 1, v3\nv_lshl_add_u32 v15, v17, 4, v15")
    A(f"s_lshl_b32 s7, s3, 7\ns_add_u32 s7, s7, {L_S}\nv_add_u32 v15, s7, v15")
    A("v_lshrrev_b32 v17, 1, v2\nv_cmp_eq_u32 s[60:61], v17, v16")
    A(f"v_bfe_u32 v18, v2, 2, 1\nv_lshlrev_b32 v18, 9, v18\nv_and_b32 v17, 1, v2\nv_lshl_add_u32 v18, v17, 7, v18\nv_lshl_add_u32 v18, v3, 5, v18\nv_add_u32 v18, {L_S}, v18")
    A(f"s_lshl_b32 s7, s4, 5\ns_lshl_b32 s62, s3, 3\ns_add_u32 s7, s7, s62\ns_lshl_b32 s7, s7, 12\ns_lshl_b32 s62, s5, 7\ns_add_u32 s7, s7, s62\ns_add_u32 s7, s7, {WS_H1}")
    A("s_mov_b32 s68, 0\ns_mov_b32 s69, -1\ns_mov_b32 s12, 0xff00ff00\ns_mov_b32 s13, 0xff00ff00\ns_mov_b32 s14, 0xff000000\ns_mov_b32 s15, 0xff00ff00")
    A("v_and_b32 v17, 1, v3\nv_lshlrev_b32 v19, 5, v17\nv_lshl_add_u32 v19, v16, 4, v19\nv_mov_b32 v17, 64\nv_cndmask_b32 v19, v19, v17, s[12:13]")
    A(f"v_and_b32 v17, 7, v2\nv_lshl_add_u32 v19, v17, 12, v19\nv_add_u32 v19, s7, v19\nv_mov_b32 v17, {OOB}\nv_cndmask_b32 v19, v19, v17, s[14:15]")
    A("v_cmp_eq_u32 vcc, 0, v2\nv_cndmask_b32 v27, v17, v27, vcc")
    A(f"s_lshl_b32 s7, s2, 13\ns_add_u32 s7, s7, {WS_H2}\nv_lshlrev_b32 v22, 4, v0\nv_add_u32 v22, s7, v22")
    for k in range(8):
        A(f"s_add_u32 s7, s4, {k}\ns_and_b32 s7, s7, 7\ns_lshl_b32 s{20+k}, s7, 10")
    A(f"v_mov_b32 v24, {F_SC}\nv_mov_b32 v25, 1")
    A(f"s_mov_b32 s62, {f32(LOG2E/16)}\ns_mov_b32 s63, 0\ns_lshl_b32 s65, s6, 3")
    if kvg:
        A(f"s_lshl_b32 s7, s4, 5\ns_add_u32 s7, s7, s5\ns_lshl_b32 s7, s7, 11\ns_lshl_b32 s28, s3, 9\ns_add_u32 s7, s7, s28\ns_add_u32 s7, s7, {WS_Q + 256}\ns_add_u32 s0, s8, s7\ns_addc_u32 s1, s9, 0")
        A("s_getreg_b32 s29, hwreg(HW_REG_XCC_ID, 0, 3)\ns_lshl_b32 s29, s29, 29\ns_and_b32 s7, s6, 0x1fffffff\ns_or_b32 s29, s29, s7\ns_lshl_b32 s30, s6, 3")
        A(f"s_lshl_b32 s7, s3, 8\ns_add_u32 s7, s7, {L_Q + 128}\nv_lshlrev_b32 v17, 2, v0\nv_add_u32 v17, s7, v17")
        A("s_mov_b32 s16, s44\ns_mov_b32 s17, s45\ns_mov_b32 s18, 0x10000\ns_mov_b32 s19, 0x20000\ns_mov_b32 s14, 0x8000")
        assert n1 == 16
    issue(n1, kp)
    stamp(1)
    if gate1:
        A(f"v_mov_b32 v23, {F_P}")
        A("s_cmp_gt_u32 s5, 27\ns_cselect_b32 s28, 1, 2")
        lds_wait("L_kv_wp", "s_cmp_lt_u32 s7, s28", addr="v23", sleep=qpsleep)
        issue(n1 + n2, kp)
    if gate:
        A(f"v_mov_b32 v23, {F_QP}")
        lds_wait("L_kv_wqp", "s_cmp_eq_u32 s7, 0", addr="v23", sleep=qpsleep)
    stamp(10)
    G2 = 36
    def kv_poll(tag):
        for i in range(4):
            A(f"s_bitcmp1_b32 s31, {i}\ns_cbranch_scc0 L_kv_qs{tag}{i}")
            A(f"s_load_dwordx16 s[{G2+16*i}:{G2+16*i+15}], s[0:1], {64*i} glc")
            A.label(f"L_kv_qs{tag}{i}")
    def kv_check():
        A("s_mov_b32 s31, 0\ns_waitcnt lgkmcnt(0)")
        for i in range(4):
            b = G2 + 16 * i
            A(f"s_add_u32 s7, s{b+1}, s{b+3}")
            for t in range(2, 8):
                A(f"s_add_u32 s7, s7, s{b+1+2*t}")
            A(f"s_cmp_lg_u32 s7, s30\ns_cselect_b32 s7, {1 << i}, 0\ns_or_b32 s31, s31, s7")
    if kvg:
        assert nv1 == 16 and not gate1
        if stamps:
            A("s_waitcnt lgkmcnt(0)")
            for i in (0, 1, 10):
                A(f"v_writelane_b32 v31, s{spair(i)}, {i}")
        A("s_mov_b32 s31, 15\ns_mov_b32 s28, 0")
        for k, upto in enumerate(kvsplit):
            issue(16 + upto, vp)
            if k: kv_check()
            kv_poll(k)
    issue(16 + nv1, vp)
    if nv1 == 16:
        A(f"s_mov_b64 exec, 1\nds_add_u32 v24, v25 offset:{F_VI - F_SC}\ns_mov_b64 exec, -1")
    A(f"s_setprio {kvprio}")
    if stamps and kvg:
        A("s_memrealtime s[100:101]")
    else:
        stamp(2)
    if kvg:
        if kvsplit: A("s_branch L_kv_qc")
        A.label("L_kv_q")
        kv_poll("x")
        A(f"s_add_u32 s28, s28, 1\ns_cmp_gt_u32 s28, {spin_max}\ns_cbranch_scc1 L_end")
        A.label("L_kv_qc")
        kv_check()
        A("s_cbranch_scc1 L_kv_q")
        if stamps: A("v_writelane_b32 v31, s100, 2")
        for i in range(32):
            A(f"v_writelane_b32 v14, s{G2+2*i}, {i}")
        A("s_mov_b32 exec_hi, 0\nds_write_b32 v17, v14\ns_mov_b32 exec_hi, -1")
        A(f"s_xor_b32 s31, s{G2+1}, s29")
        for i in range(1, 4):
            A(f"s_xor_b32 s7, s{G2+16*i+1}, s29\ns_or_b32 s31, s31, s7")
        A("s_cbranch_scc0 L_kv_nomix")
        A("ds_write_b32 v24, v25 offset:4")
        A.label("L_kv_nomix")
        A("s_mov_b32 s52, 0x07060500\ns_mov_b32 s53, 0x07060501\ns_mov_b32 s54, 0x07060502\ns_mov_b32 s55, 0x07060503")
        A("s_mov_b32 s56, 0x05040100\ns_mov_b32 s57, 0x07060302\ns_mov_b32 s58, 0x0c0c0400\ns_mov_b32 s59, 0x04000c0c")
        A(f"s_mov_b32 s60, 0x00030003\ns_mov_b32 s61, 0x000c000c\ns_mov_b32 s62, {f32(LOG2E/16)}\ns_mov_b32 s63, 0\ns_mov_b32 s65, s30\ns_mov_b32 s68, 0\ns_mov_b32 s69, -1")
        stamp(15)
        A("s_waitcnt lgkmcnt(0)")
    A("s_barrier")
    stamp(5)
    QB = 32
    for t in range(4):
        A(f"ds_read_b128 v[{QB+4*t}:{QB+4*t+3}], v13 offset:{L_Q + 128*t}")
    A("ds_read_b32 v29, v24 offset:4")
    A(f"s_waitcnt vmcnt({0 if nokv else nv1}) lgkmcnt(0)")
    stamp(3)
    DB = 48
    for t in range(4):
        for tau in range(4):
            r = KB + 16 * tau + 4 * t
            c = "0" if t == 0 else f"v[{DB+4*tau}:{DB+4*tau+3}]"
            A(f"v_mfma_f32_16x16x32_bf16 v[{DB+4*tau}:{DB+4*tau+3}], v[{r}:{r+3}], v[{QB+4*t}:{QB+4*t+3}], {c}")
    A("v_readfirstlane_b32 s64, v29")
    issue(16 + nv1 + nv2, vp)
    A("s_mov_b64 exec, s[60:61]")
    for tau in range(4):
        A(f"ds_write_b128 v15, v[{DB+4*tau}:{DB+4*tau+3}] offset:{32*tau}")
    A("s_mov_b64 exec, 1")
    A("ds_add_u32 v24, v25")
    A("s_mov_b64 exec, -1")
    issue(32, vp)
    if nv1 < 16:
        A(f"s_mov_b64 exec, 1\nds_add_u32 v24, v25 offset:{F_VI - F_SC}\ns_mov_b64 exec, -1")
    stamp(4)
    lds_wait("L_kv_w1", "s_cmp_lt_u32 s7, 4")
    stamp(6)
    for part in range(2):
        for sg in range(2):
            for hf in range(2):
                r = 64 + 16 * part + 8 * sg + 4 * hf
                A(f"ds_read_b128 v[{r}:{r+3}], v18 offset:{1024*part + 256*sg + 16*hf}")
    A("s_waitcnt lgkmcnt(0)")
    for i in range(8):
        A(f"v_pk_add_f32 {pr(64+2*i)}, {pr(64+2*i)}, {pr(80+2*i)}")
    for i in range(8):
        A(f"v_cvt_pk_bf16_f32 v{80+i}, v{64+2*i}, v{65+2*i}")
    for i in range(8):
        A(f"v_lshlrev_b32 v{64+2*i}, 16, v{80+i}")
        A(f"v_and_b32 v{65+2*i}, 0xffff0000, v{80+i}")
    A("v_max3_f32 v96, v64, v65, v66\nv_max3_f32 v97, v67, v68, v69\nv_max3_f32 v98, v70, v71, v72\nv_max3_f32 v99, v73, v74, v75")
    A("v_max3_f32 v96, v96, v76, v77\nv_max3_f32 v97, v97, v78, v79\nv_max3_f32 v96, v96, v97, v98\nv_max_f32 v96, v96, v99")
    A(f"v_max_f32_dpp v96, v96, v96 quad_perm:[1,0,3,2] {DPPM}")
    swapadd(16, 96, 97, "max")
    swapadd(32, 96, 97, "max")
    A("v_mul_f32 v97, s62, v96")
    for i in range(16):
        A(f"v_fma_f32 v{64+i}, v{64+i}, s62, -v97")
    for i in range(16):
        A(f"v_exp_f32 v{64+i}, v{64+i}")
    PA = 100
    for i in range(8):
        A(f"v_cvt_pk_bf16_f32 v{PA+i}, v{64+2*i}, v{65+2*i}")
    for i in range(4):
        A(f"v_pk_add_f32 {pr(64+2*i)}, {pr(64+2*i)}, {pr(72+2*i)}")
    for i in range(2):
        A(f"v_pk_add_f32 {pr(64+2*i)}, {pr(64+2*i)}, {pr(68+2*i)}")
    A("v_pk_add_f32 v[64:65], v[64:65], v[66:67]\nv_add_f32 v98, v64, v65")
    A(f"v_add_f32_dpp v98, v98, v98 quad_perm:[1,0,3,2] {DPPM}")
    swapadd(16, 98, 97)
    swapadd(32, 98, 97)
    A(f"v_mov_b32_dpp v108, v96 row_newbcast:0 {DPPM}\nv_mov_b32_dpp v109, v98 row_newbcast:0 {DPPM}")
    A(f"v_mov_b32_dpp v110, v96 row_newbcast:4 {DPPM}\nv_mov_b32_dpp v111, v98 row_newbcast:4 {DPPM}")
    stamp(7)
    FB, OB = 64, 32
    for sg in range(2):
        for p in range(4):
            if not nokv: A(f"s_waitcnt vmcnt({16 - (8*sg + 2*p + 2)})")
            ra = VB + 32 * sg + 8 * p; rb = ra + 4
            for q in range(4):
                A(f"v_perm_b32 v{FB + 4*(2*q) + p}, v{rb+q}, v{ra+q}, s56")
                A(f"v_perm_b32 v{FB + 4*(2*q+1) + p}, v{rb+q}, v{ra+q}, s57")
        for i in range(8):
            c = "0" if sg == 0 else f"v[{OB+4*i}:{OB+4*i+3}]"
            A(f"v_mfma_f32_16x16x32_bf16 v[{OB+4*i}:{OB+4*i+3}], v[{PA+4*sg}:{PA+4*sg+3}], v[{FB+4*i}:{FB+4*i+3}], {c}")
    stamp(8)
    for i in range(8):
        A(f"v_add_f32_dpp v{112+i}, v{OB+4*i+1}, v{OB+4*i} row_shl:8 {DPPM} bound_ctrl:0")
    for i in range(4):
        A(f"v_cndmask_b32 v{112+i}, v{112+i}, v{116+i}, s[68:69]")
    for i in range(4):
        A(f"v_cndmask_b32 v{112+i}, v{112+i}, v{108+i}, s[12:13]")
    for i in range(4):
        A(f"v_perm_b32 v{112+i}, v{112+i}, v12, s{52 + i}")
    if fast1:
        A("s_cmp_lg_u32 s64, 0\ns_cbranch_scc1 L_kv_st1")
        A("buffer_store_dwordx4 v[112:115], v19, s[8:11], 0 offen")
        A("s_branch L_kv_st2")
        A.label("L_kv_st1")
    A("buffer_store_dwordx4 v[112:115], v19, s[8:11], 0 offen sc1")
    A.label("L_kv_st2")
    A(f"v_mov_b32 v24, {F_ST}")
    A("s_mov_b64 exec, 1\nds_add_u32 v24, v25\ns_mov_b64 exec, -1")
    stamp(9)
    A("s_cmp_ge_u32 s2, 112\ns_cbranch_scc1 L_kv_fin")
    if h2p < 4: A(f"s_cmp_ge_u32 s3, {h2p}\ns_cbranch_scc1 L_kv_fin")
    A(f"v_mov_b32 v24, {F_PUB}\ns_mov_b64 s[66:67], -1")
    lds_wait("L_kv_w2", "s_cmp_lt_u32 s7, 4")
    stamp(11)
    if stagger2:
        A("s_mov_b32 s7, s3")
        A.label("L_kv_stg2")
        A("s_cmp_eq_u32 s7, 0\ns_cbranch_scc1 L_kv_p2")
        A(f"s_sleep {stagger2}\ns_sub_u32 s7, s7, 1\ns_branch L_kv_stg2")
    A.label("L_kv_p2")
    A("s_mov_b64 exec, s[66:67]")
    for k in range(8):
        A(f"buffer_load_dwordx4 v[{64+4*k}:{67+4*k}], v22, s[8:11], s{20+k} offen {h2ld}")
    A("s_add_u32 s63, s63, 1")
    A(f"s_cmp_gt_u32 s63, {spin_max}\ns_cbranch_scc1 L_end")
    for k in range(8):
        r = 64 + 4 * k
        A(f"s_waitcnt vmcnt({7-k})")
        A(f"v_perm_b32 v{96+2*k}, v{r+1}, v{r}, s58\nv_perm_b32 v{97+2*k}, v{r+3}, v{r+2}, s59")
        if k == 0:
            A("v_add_u32 v112, v96, v97")
        else:
            A(f"v_add3_u32 v112, v112, v{96+2*k}, v{97+2*k}")
    A("v_cmp_ne_u32 s[66:67], s65, v112")
    A("s_cmp_lg_u64 s[66:67], 0")
    if h2sleep:
        A(f"s_cbranch_scc0 L_kv_p2d\ns_sleep {h2sleep}\ns_branch L_kv_p2")
        A.label("L_kv_p2d")
    else:
        A("s_cbranch_scc1 L_kv_p2")
    A("s_mov_b64 exec, -1")
    stamp(12)
    for st_ in (16, 8, 4):
        for base in range(64, 64 + st_, 2):
            A(f"v_pk_add_f32 {pr(base)}, {pr(base)}, {pr(base+st_)}")
    A("v_permlane32_swap_b32 v64, v66\nv_permlane32_swap_b32 v65, v67")
    A(f"v_pk_add_f32 {pr(64)}, {pr(64)}, {pr(66)}")
    A("v_permlane16_swap_b32 v64, v65")
    A("v_add_f32 v64, v64, v65")
    for mod in ("quad_perm:[2,3,0,1]", "row_ror:4", "row_ror:8"):
        A(f"v_add_f32_dpp v64, v64, v64 {mod} {DPPM}")
    A(f"v_mov_b32_dpp v68, v64 quad_perm:[1,0,3,2] {DPPM}")
    A("v_cvt_pk_bf16_f32 v65, v64, v68")
    A("v_and_b32 v68, 0xffff0000, v65\nv_lshlrev_b32 v64, 16, v65")
    A(f"v_mul_f32 v66, {f32(-LOG2E)}, v68\nv_exp_f32 v66, v66\nv_add_f32 v66, 1.0, v66\nv_rcp_f32 v66, v66\nv_mul_f32 v66, v68, v66")
    round_bf16(66, 67)
    A("v_mul_f32 v64, v64, v66")
    round_bf16(64, 67)
    A("v_lshlrev_b32 v28, 16, v28\nv_add_f32 v64, v64, v28\nv_cvt_pk_bf16_f32 v64, v64, v64")
    A("buffer_store_short v64, v27, s[32:35], 0 offen")
    stamp(13)
    A("s_cmp_lg_u32 s2, 0\ns_cbranch_scc1 L_kv_fin")
    A("v_lshlrev_b32 v28, 24, v0")
    A("buffer_store_dword v12, v28, s[8:11], 0 offen")
    A.label("L_kv_fin")
    stamp(14)
    stamps_out([3,4,5,6,7,8,9,11,12,13,14,15] if kvg else [0,1,2,3,4,5,6,7,8,9,10,11,12,13,14], 31, "s3")
    A("s_endpgm")

    A.label("L_aux")
    A("s_waitcnt lgkmcnt(0)")
    A(f"s_mov_b32 s8, s38\ns_mov_b32 s9, s39\ns_mov_b32 s10, {WS_SIZE}\ns_mov_b32 s11, 0x20000")
    A("s_load_dword s6, s[38:39], 0")
    A("s_getreg_b32 s17, hwreg(HW_REG_XCC_ID, 0, 3)")
    if stamps:
        A("v_mov_b32 v63, 0\ns_mov_b32 s90, 0\ns_mov_b32 s92, 0\ns_mov_b32 s100, 0")
    A("s_mov_b32 s20, 0x05040100\ns_mov_b32 s21, 0x07060302")
    A("s_mov_b32 s12, 0x07060500\ns_mov_b32 s13, 0x07060501\ns_mov_b32 s14, 0x07060502\ns_mov_b32 s15, 0x07060503")
    A("s_lshl_b32 s16, s4, 5\ns_add_u32 s16, s16, s5")
    A("s_lshl_b32 s44, s4, 9\ns_lshl_b32 s45, s5, 3\ns_add_u32 s44, s44, s45\ns_mul_i32 s44, s44, 896")
    A("s_add_u32 s44, s24, s44\ns_addc_u32 s45, s25, 0")
    A("s_mul_i32 s46, s61, 7168\ns_add_u32 s46, s32, s46\ns_addc_u32 s47, s33, 0")
    A("s_lshl_b32 s48, s3, 8\ns_add_u32 s48, s48, 3584\nv_lshlrev_b32 v11, 4, v2\nv_add_u32 v11, s48, v11")
    A("v_cmp_eq_u32 vcc, 1, v3\nv_mov_b32 v13, 229376\nv_cndmask_b32 v13, 0, v13, vcc\nv_add_u32 v11, v11, v13")
    A("v_cmp_gt_u32 vcc, 2, v3")
    A("v_mov_b32 v6, s46\nv_mov_b32 v13, s44\nv_cndmask_b32 v6, v6, v13, vcc")
    A("v_mov_b32 v7, s47\nv_mov_b32 v13, s45\nv_cndmask_b32 v7, v7, v13, vcc")
    A("v_add_co_u32 v6, vcc, v6, v11\nv_addc_co_u32 v7, vcc, 0, v7, vcc")
    OW = 128
    NW = 8 if (wfirst and not nowo) else 0
    if wfirst:
        for i in range(32):
            A(f"v_mov_b32 v{128+i}, 0")
        A("s_mov_b32 s45, 0xffff\ns_cmp_eq_u32 s3, 3\ns_cselect_b32 s44, 0x00ff00ff, -1\ns_cselect_b32 s45, 0xff, s45")
        A("s_mov_b64 exec, s[44:45]")
        for e in range(NW):
            A(f"global_load_dwordx4 v[{OW+4*e}:{OW+4*e+3}], v[6:7], off offset:{896*e - 3584}{wflag}")
        A("s_mov_b64 exec, -1")
    A("v_lshrrev_b32 v13, 1, v3\nv_lshl_add_u32 v13, v2, 1, v13\ns_lshl_b32 s48, s3, 5\nv_add_u32 v13, s48, v13")
    A(f"s_lshl_b32 s48, s16, 5\ns_add_u32 s48, s48, {WS_H2}\nv_and_b32 v8, 1, v3\nv_lshlrev_b32 v8, 4, v8\nv_lshl_add_u32 v8, v13, 13, v8\nv_add_u32 v8, s48, v8")
    A(f"v_mov_b32 v11, {OOB}\nv_cmp_gt_u32 vcc, 112, v13\nv_cndmask_b32 v8, v11, v8, vcc")
    A("v_and_b32 v13, 7, v13\nv_cmp_eq_u32 vcc, s4, v13\nv_cndmask_b32 v62, v11, v8, vcc\nv_cndmask_b32 v61, v8, v11, vcc")
    A(f"v_bfe_u32 v9, v2, 2, 1\nv_lshlrev_b32 v9, 6, v9\nv_lshl_add_u32 v9, v3, 4, v9\nv_add_u32 v9, {L_AT}, v9")
    A(f"s_lshl_b32 s48, s16, 11\ns_lshl_b32 s49, s3, 9\ns_add_u32 s49, s49, s48\ns_add_u32 s49, s49, {WS_Q}\ns_add_u32 s18, s8, s49\ns_addc_u32 s19, s9, 0")
    A("s_waitcnt lgkmcnt(0)")
    epoch()
    A("v_and_b32 v13, 3, v0\nv_lshlrev_b32 v13, 3, v13\nv_bfe_u32 v60, v12, v13, 8")
    A("s_lshl_b32 s17, s17, 29\ns_and_b32 s7, s6, 0x1fffffff\ns_or_b32 s17, s17, s7")
    A("s_lshl_b32 s22, s6, 3\ns_mov_b32 s23, 0")
    A("s_lshl_b32 s7, s3, 5\ns_sub_u32 s7, s5, s7\ns_cmp_gt_i32 s7, 27\ns_cbranch_scc1 L_aux_bq1")
    A("s_cmp_gt_u32 s3, 1\ns_cbranch_scc1 L_aux_bq1")
    A(f"s_and_b32 s44, s16, 0xfc\ns_lshl_b32 s44, s44, 8\ns_lshl_b32 s45, s62, 6\ns_add_u32 s44, s44, s45\ns_add_u32 s44, s44, {WS_P1}")
    A(f"s_and_b32 s45, s61, 0xf8\ns_lshl_b32 s45, s45, 8\ns_and_b32 s46, s61, 7\ns_lshl_b32 s46, s46, 5\ns_add_u32 s45, s45, s46\ns_add_u32 s45, s45, {WS_PF}")
    A("v_lshrrev_b32 v10, 1, v14\nv_lshlrev_b32 v10, 8, v10\nv_and_b32 v13, 1, v14\nv_lshl_add_u32 v10, v13, 5, v10\nv_lshlrev_b32 v13, 8, v14")
    A("s_cmp_eq_u32 s3, 1\ns_cselect_b32 s44, s44, s45\ns_cselect_b64 vcc, -1, 0")
    A("v_cndmask_b32 v10, v13, v10, vcc\nv_lshrrev_b32 v13, 5, v0\nv_lshl_add_u32 v10, v13, 4, v10\nv_add_u32 v10, s44, v10")
    A("v_and_b32 v13, 0x18, v0\nv_cmp_eq_u32 vcc, 0, v13\nv_cndmask_b32 v10, v11, v10, vcc")
    A(f"s_waitcnt vmcnt({NW + (2 if notile else 16)})")
    for p in range(4):
        A(f"v_lshlrev_b32 v{32+2*p}, 16, v{24+p}\nv_and_b32 v{33+2*p}, 0xffff0000, v{24+p}")
    A(f"v_pk_add_f32 {pr(46)}, {pr(32)}, {pr(34)}\nv_pk_add_f32 {pr(48)}, {pr(36)}, {pr(38)}\nv_pk_add_f32 {pr(46)}, {pr(46)}, {pr(48)}\nv_add_f32 v46, v46, v47")
    wave_sum_to_sgpr(46, 48)
    A(f"v_mov_b32 v30, {f32(1.0/448)}\nv_mul_f32 v46, s48, v30")
    A("v_cmp_gt_u32 vcc, 56, v0")
    for p in range(4):
        A(f"v_pk_add_f32 {pr(32+2*p)}, {pr(32+2*p)}, {pr(46)} op_sel_hi:[1,0] neg_lo:[0,1] neg_hi:[0,1]")
    A(f"v_pk_mul_f32 {pr(24)}, {pr(32)}, {pr(32)}")
    for p in range(1, 4):
        A(f"v_pk_fma_f32 {pr(24)}, {pr(32+2*p)}, {pr(32+2*p)}, {pr(24)}")
    A("v_add_f32 v24, v24, v25\nv_cndmask_b32 v24, 0, v24, vcc")
    wave_sum_to_sgpr(24, 48)
    A("v_mul_f32 v24, s48, v30")
    A("v_cvt_pk_bf16_f32 v25, v46, v24\nv_lshlrev_b32 v46, 16, v25\nv_and_b32 v24, 0xffff0000, v25")
    A(f"v_add_f32 v24, {f32(1e-5)}, v24")
    round_bf16(24, 25)
    A("v_sqrt_f32 v24, v24")
    round_bf16(24, 25)
    A("v_rcp_f32 v28, v24")
    A(f"s_waitcnt vmcnt({NW + (0 if notile else 14)})")
    for p in range(7):
        A(f"v_lshlrev_b32 v{32+2*p}, 16, v{XP+p}\nv_and_b32 v{33+2*p}, 0xffff0000, v{XP+p}")
    for p in range(7):
        A(f"v_pk_add_f32 {pr(32+2*p)}, {pr(32+2*p)}, {pr(46)} op_sel_hi:[1,0] neg_lo:[0,1] neg_hi:[0,1]")
    for p in range(7):
        A(f"v_cvt_pk_bf16_f32 v{XP+p}, v{32+2*p}, v{33+2*p}")
    for p in range(7):
        A(f"v_lshlrev_b32 v{32+2*p}, 16, v{XP+p}\nv_and_b32 v{33+2*p}, 0xffff0000, v{XP+p}")
    for p in range(7):
        A(f"v_pk_mul_f32 {pr(46+2*p)}, {pr(32+2*p)}, {pr(28)} op_sel_hi:[1,0]")
    for p in range(7):
        A(f"v_pk_fma_f32 {pr(32+2*p)}, {pr(46+2*p)}, {pr(24)}, {pr(32+2*p)} op_sel_hi:[1,0,1] neg_lo:[1,0,0] neg_hi:[1,0,0]")
    for p in range(7):
        A(f"v_pk_fma_f32 {pr(46+2*p)}, {pr(32+2*p)}, {pr(28)}, {pr(46+2*p)} op_sel_hi:[1,0,1]")
    for p in range(7):
        A(f"v_cvt_pk_bf16_f32 v{XP+p}, v{46+2*p}, v{47+2*p}")
    for i in range(8):
        A(f"v_mov_b32 v{32+i}, 0")
    for u in range(7):
        if not notile: A(f"s_waitcnt vmcnt({NW + 14 - (2*u + 2)})")
        ra = WB + 8 * u; rb = ra + 4
        for q in range(4):
            A(f"v_perm_b32 v{40+2*q}, v{rb+q}, v{ra+q}, s20\nv_perm_b32 v{41+2*q}, v{rb+q}, v{ra+q}, s21")
        for q in range(8):
            A(f"v_dot2c_f32_bf16 v{32+q}, v{40+q}, v{XP+u}")
    for i in range(4):
        A(f"v_permlane32_swap_b32 v{32+i}, v{36+i}")
    A(f"v_pk_add_f32 {pr(32)}, {pr(32)}, {pr(36)}\nv_pk_add_f32 {pr(34)}, {pr(34)}, {pr(38)}")
    for i in range(4):
        A(f"v_add_f32_dpp v{32+i}, v{32+i}, v{32+i} row_ror:8 {DPPM}")
    for i in range(4):
        A(f"v_mov_b32 v{36+i}, v{32+i}")
    for i in range(4):
        A(f"v_permlane16_swap_b32 v{32+i}, v{36+i}")
    A(f"v_pk_add_f32 {pr(32)}, {pr(32)}, {pr(36)}\nv_pk_add_f32 {pr(34)}, {pr(34)}, {pr(38)}")
    for i in range(4):
        A(f"v_perm_b32 v{32+i}, v{32+i}, v12, s{12+i}")
    if fastq:
        A(f"s_cmp_eq_u32 s3, 1\ns_cselect_b32 s7, {WS_P1S - WS_P1}, 0\ns_cbranch_scc0 L_aux_ps")
        A("buffer_store_dwordx4 v[32:35], v10, s[8:11], 0 offen")
        if noslow: A("s_branch L_aux_ps2")
        A.label("L_aux_ps")
        A("buffer_store_dwordx4 v[32:35], v10, s[8:11], s7 offen sc1")
        if noslow: A.label("L_aux_ps2")
    else:
        A("buffer_store_dwordx4 v[32:35], v10, s[8:11], 0 offen " + qst)
    A(f"v_mov_b32 v40, {F_P}\nv_mov_b32 v41, 1")
    A("s_mov_b64 exec, 1\nds_add_u32 v40, v41\ns_mov_b64 exec, -1")
    stamp(1)
    if ackp:
        A(f"s_waitcnt vmcnt({NW})\ns_memrealtime s[24:25]\ns_waitcnt lgkmcnt(0)\nv_writelane_b32 v63, s24, 12")
    A.label("L_aux_bq1")
    for i in range(0 if wfirst else 32):
        A(f"v_mov_b32 v{128+i}, 0")
    A(f"s_lshl_b32 s7, s3, 8\nv_lshlrev_b32 v14, 2, v0\nv_add_u32 v14, s7, v14")
    A(f"v_mov_b32 v26, {F_MIX}\nv_mov_b32 v27, 1")
    GB = 24

    def gather64(label, base, delta=0):
        A("s_mov_b32 s23, 0")
        A.label(label)
        for i in range(4):
            A(f"s_load_dwordx16 s[{GB+16*i}:{GB+16*i+15}], s[{base}:{base+1}], {64*i} glc")
        A("s_add_u32 s23, s23, 1")
        if delta:
            A(f"s_cmp_eq_u32 s23, {tfast}\ns_cselect_b32 s7, {delta}, 0\ns_add_u32 s{base}, s{base}, s7\ns_addc_u32 s{base+1}, s{base+1}, 0")
        A(f"s_cmp_gt_u32 s23, {spin_max}\ns_cbranch_scc1 L_end")
        A("s_waitcnt lgkmcnt(0)")
        for i in range(64):
            A(f"v_writelane_b32 v13, s{GB+i}, {i}")
        A("v_and_b32 v11, 0xff, v13\nv_cmp_ne_u32 vcc, v11, v60")
        A(f"s_cbranch_vccnz {label}")

    A("s_cmp_lg_u32 s3, 1\ns_cbranch_scc1 L_aux_wqp0")
    A(f"s_lshl_b32 s7, s16, 8\ns_add_u32 s7, s7, {WS_P1}\ns_add_u32 s0, s8, s7\ns_addc_u32 s1, s9, 0")
    A(f"s_lshl_b32 s7, s4, 16\ns_add_u32 s7, s7, {WS_Q}\nv_lshlrev_b32 v10, 2, v3\nv_and_b32 v11, 3, v0\nv_add_u32 v10, v10, v11\nv_lshlrev_b32 v10, 11, v10\nv_bfe_u32 v11, v0, 2, 2\nv_lshl_add_u32 v10, v11, 4, v10\nv_add_u32 v10, s7, v10\ns_lshl_b32 s7, s5, 6\nv_add_u32 v10, s7, v10")
    A("v_mov_b32 v33, s17\nv_mov_b32 v35, s17")
    gather64("L_aux_g1", 0, (WS_P1S - WS_P1) if fastq else 0)
    swapadd(16, 13, 11)
    swapadd(32, 13, 11)
    A(f"v_mov_b32_dpp v11, v13 quad_perm:[1,1,3,3] {DPPM}")
    A("v_cvt_pk_bf16_f32 v13, v13, v11")
    A(f"v_mov_b32_dpp v32, v13 quad_perm:[0,0,0,0] {DPPM}\nv_mov_b32_dpp v34, v13 quad_perm:[2,2,2,2] {DPPM}")
    A("s_mov_b32 s7, 0x8000")
    if fastq:
        A(f"s_mov_b32 s0, {WS_QS - WS_Q}\ns_mov_b32 s1, {WS_QS - WS_Q + 0x8000}")
        A("buffer_store_dwordx4 v[32:35], v10, s[8:11], 0 offen")
        A("buffer_store_dwordx4 v[32:35], v10, s[8:11], s7 offen")
        if not noslow:
            A("buffer_store_dwordx4 v[32:35], v10, s[8:11], s0 offen sc1")
            A("buffer_store_dwordx4 v[32:35], v10, s[8:11], s1 offen sc1")
    else:
        A("buffer_store_dwordx4 v[32:35], v10, s[8:11], 0 offen " + qst)
        A("buffer_store_dwordx4 v[32:35], v10, s[8:11], s7 offen " + qst)
    stamp(2)
    A(f"ds_write_b32 v26, v27 offset:{F_QP - F_MIX}")
    if ackp:
        A(f"v_writelane_b32 v63, s23, 14\ns_waitcnt vmcnt({NW})\ns_memrealtime s[24:25]\ns_waitcnt lgkmcnt(0)\nv_writelane_b32 v63, s24, 13")
    A("s_branch L_aux_bq2")
    A.label("L_aux_wqp0")
    if swarm:
        A("s_cmp_lt_u32 s3, 2\ns_cbranch_scc1 L_aux_nosw")
        A(f"s_lshl_b32 s7, s3, 9\ns_sub_u32 s7, s7, 2048\ns_add_u32 s0, s18, s7\ns_addc_u32 s1, s19, -1")
        A(f"s_lshl_b32 s7, s16, 8\ns_add_u32 s7, s7, {WS_P1}\ns_add_u32 s24, s8, s7\ns_addc_u32 s25, s9, 0")
        A("s_lshl_b32 s7, s3, 7\ns_and_b32 s7, s7, 128\ns_load_dword s26, s[24:25], s7 glc")
        for i in range(8):
            A(f"s_load_dword s{28+i}, s[0:1], {128*i} glc")
        A.label("L_aux_nosw")
    if probe:
        A("s_cmp_lt_u32 s3, 2\ns_cbranch_scc1 L_aux_noprobe")
        A("s_lshl_b32 s7, s2, 16\ns_lshl_b32 s0, s3, 15\ns_add_u32 s7, s7, s0\ns_add_u32 s7, s7, 0x2000000\ns_add_u32 s0, s8, s7\ns_addc_u32 s1, s9, 0")
        A("s_mov_b32 s27, 0\ns_cmp_eq_u32 s3, 3\ns_cselect_b32 s30, 1024, 0\nv_mov_b32 v170, 0")
        for i in range(probe):
            A("s_memrealtime s[24:25]\ns_waitcnt lgkmcnt(0)")
            A("s_load_dword s26, s[0:1], s27 glc\ns_waitcnt lgkmcnt(0)\ns_memrealtime s[28:29]\ns_add_u32 s27, s27, s30\ns_waitcnt lgkmcnt(0)")
            A(f"v_writelane_b32 v170, s24, {2*i}\nv_writelane_b32 v170, s28, {2*i+1}")
            A(f"s_sleep {psleep}")
        A.label("L_aux_noprobe")
    A(f"v_mov_b32 v15, {F_QP}")
    lds_wait("L_aux_wqp1", "s_cmp_eq_u32 s7, 0", cnt="s23", tmp="v28", addr="v15", sleep=qpsleep)
    A.label("L_aux_bq2")
    A("s_mov_b32 s1, 0\ns_mov_b32 s23, 0")
    def wo_try(tag, thr):
        A(f"s_cmp_eq_u64 vcc, 0\ns_cbranch_scc1 L_aux_wt{tag}")
        if thr > 0:
            A(f"v_readfirstlane_b32 s7, v28\ns_cmp_lt_u32 s7, {thr}\ns_cbranch_scc1 L_aux_wt{tag}")
        A("s_mov_b64 exec, vcc")
        for e in range(0 if nowo else 8):
            A(f"global_load_dwordx4 v[{OW+4*e}:{OW+4*e+3}], v[6:7], off offset:{896*e - 3584}{wflag}")
        A("s_mov_b64 exec, -1\ns_mov_b64 vcc, 0")
        A.label(f"L_aux_wt{tag}")
    if wovi >= 0:
        A("s_mov_b32 vcc_hi, 0xffff\ns_cmp_eq_u32 s3, 3\ns_cselect_b32 vcc_lo, 0x00ff00ff, -1\ns_cselect_b32 vcc_hi, 0xff, vcc_hi")
        A(f"v_mov_b32 v15, {F_VI}\nds_read_b32 v28, v15\ns_waitcnt lgkmcnt(0)")
    if roll:
        A(f"s_mov_b32 s0, 0xff\ns_mov_b32 s20, 0\ns_lshl_b32 s7, s3, 8\nv_and_b32 v15, 7, v0\nv_lshlrev_b32 v15, 2, v15\nv_add_u32 v15, s7, v15\ns_mov_b32 exec_hi, 0")
        if gsleep:
            A("s_branch L_aux_q")
            A.label("L_aux_qz")
            A(f"s_sleep {gsleep}")
        A.label("L_aux_q")
        A("s_lshl_b32 s21, s0, 8\ns_or_b32 s21, s21, s0\ns_lshr_b32 s21, s21, s20\ns_and_b32 s21, s21, 0xff")
        for k in range(4):
            A(f"s_ff1_i32_b32 s7, s21\ns_bitset0_b32 s21, s7\ns_add_u32 s7, s7, s20\ns_and_b32 s7, s7, 7\ns_lshl_b32 s{12+k}, s7, 6")
            A(f"s_load_dwordx16 s[{GB+16*k}:{GB+16*k+15}], s[18:19], s{12+k} glc")
        A("s_xor_b32 s20, s20, 4\ns_add_u32 s23, s23, 1")
        if fastq:
            A(f"s_cmp_eq_u32 s23, {tfast}\ns_cselect_b32 s7, {WS_QS - WS_Q}, 0\ns_add_u32 s18, s18, s7\ns_addc_u32 s19, s19, 0")
        A(f"s_cmp_gt_u32 s23, {spin_max}\ns_cbranch_scc1 L_end")
        A("s_waitcnt lgkmcnt(0)")
        for k in range(4):
            b = GB + 16 * k
            A(f"s_add_u32 s7, s{b+1}, s{b+3}")
            for t in range(2, 8):
                A(f"s_add_u32 s7, s7, s{b+1+2*t}")
            A(f"s_cmp_lg_u32 s7, s22\ns_cbranch_scc1 L_aux_qs{k}")
            A(f"s_mov_b32 exec_lo, 0x{0xff << (8*k):x}\ns_lshr_b32 s7, s{12+k}, 1\nv_add_u32 v11, s7, v15")
            for i in range(8):
                A(f"v_writelane_b32 v13, s{b+2*i}, {8*k+i}")
            A(f"ds_write_b32 v11, v13 offset:{L_Q}")
            A(f"s_lshr_b32 s7, s{12+k}, 6\ns_bitset0_b32 s0, s7\ns_xor_b32 s7, s{b+1}, s17\ns_or_b32 s1, s1, s7")
            A.label(f"L_aux_qs{k}")
        A("s_cmp_lg_u32 s0, 0\ns_cbranch_scc1 " + ("L_aux_qz" if gsleep else "L_aux_q"))
        A("s_mov_b64 exec, -1")
        A("s_mov_b32 s20, 0x05040100\ns_mov_b32 s21, 0x07060302")
        A("s_mov_b32 s12, 0x07060500\ns_mov_b32 s13, 0x07060501\ns_mov_b32 s14, 0x07060502\ns_mov_b32 s15, 0x07060503")
    else:
        for rnd in range(1 if kvg else 2):
            A("s_mov_b32 s0, 15")
            A.label(f"L_aux_q{rnd}")
            for i in range(4):
                A(f"s_bitcmp1_b32 s0, {i}\ns_cbranch_scc0 L_aux_qs{rnd}{i}")
                A(f"s_load_dwordx16 s[{GB+16*i}:{GB+16*i+15}], s[18:19], {64*(4*rnd+i)} glc")
                A.label(f"L_aux_qs{rnd}{i}")
            if wovi >= 0:
                wo_try(rnd, wovi)
                A("ds_read_b32 v28, v15")
            A("s_add_u32 s23, s23, 1")
            if fastq:
                A(f"s_cmp_eq_u32 s23, {tfast}\ns_cselect_b32 s7, {WS_QS - WS_Q}, 0\ns_add_u32 s18, s18, s7\ns_addc_u32 s19, s19, 0")
            A(f"s_cmp_gt_u32 s23, {spin_max}\ns_cbranch_scc1 L_end")
            A("s_mov_b32 s0, 0")
            A("s_waitcnt lgkmcnt(0)")
            for i in range(4):
                b = GB + 16 * i
                A(f"s_add_u32 s7, s{b+1}, s{b+3}")
                for t in range(2, 8):
                    A(f"s_add_u32 s7, s7, s{b+1+2*t}")
                A(f"s_cmp_lg_u32 s7, s22\ns_cselect_b32 s7, {1 << i}, 0\ns_or_b32 s0, s0, s7")
            if gsleep:
                A(f"s_cbranch_scc0 L_aux_qd{rnd}\ns_sleep {gsleep}\ns_branch L_aux_q{rnd}")
                A.label(f"L_aux_qd{rnd}")
            else:
                A(f"s_cbranch_scc1 L_aux_q{rnd}")
            for i in range(32):
                A(f"v_writelane_b32 v13, s{GB+2*i}, {32*rnd+i}")
            for i in range(4):
                A(f"s_xor_b32 s7, s{GB+16*i+1}, s17\ns_or_b32 s1, s1, s7")
        if kvg: A("s_mov_b32 exec_hi, 0")
        A(f"ds_write_b32 v14, v13 offset:{L_Q}")
        if kvg: A("s_mov_b32 exec_hi, -1")
    if ackp: A("v_writelane_b32 v63, s23, 15")
    if force_mix: A("s_mov_b32 s1, 1")
    A("s_cmp_eq_u32 s1, 0\ns_cbranch_scc1 L_aux_nomix")
    A("ds_write_b32 v26, v27")
    A.label("L_aux_nomix")
    stamp(3)
    A(f"s_lshl_b32 s7, s16, 12\ns_add_u32 s7, s7, {WS_H1}\nv_and_b32 v15, 1, v0")
    A("v_lshrrev_b32 v5, 1, v0\nv_lshlrev_b32 v5, 7, v5\nv_add_u32 v5, s7, v5\nv_lshl_add_u32 v4, v15, 5, v5")
    A(f"v_lshlrev_b32 v10, 4, v15\nv_lshl_add_u32 v10, v3, 2, v10\nv_add_u32 v10, {L_AT}, v10")
    A("s_waitcnt lgkmcnt(0)")
    A("s_barrier")
    stamp(4)
    A("ds_read_b32 v29, v26")
    OW = 128
    def wo_loads():
        if wovi >= 0:
            A("s_cmp_eq_u64 vcc, 0\ns_cbranch_scc1 L_aux_wt2")
            A(f"v_mov_b32 v26, {F_VI}")
            lds_wait("L_aux_wvi", "s_cmp_lt_u32 s7, 4", cnt="s23", tmp="v28", addr="v26", sleep=visleep)
            wo_try(2, 0)
        elif not wfirst:
            A(f"v_mov_b32 v26, {F_VI}")
            lds_wait("L_aux_wvi", "s_cmp_lt_u32 s7, 4", cnt="s23", tmp="v28", addr="v26", sleep=visleep)
            A("s_mov_b32 s25, 0xffff\ns_cmp_eq_u32 s3, 3\ns_cselect_b32 s24, 0x00ff00ff, -1\ns_cselect_b32 s25, 0xff, s25")
            A("s_mov_b64 exec, s[24:25]")
            for e in range(0 if nowo else 8):
                A(f"global_load_dwordx4 v[{OW+4*e}:{OW+4*e+3}], v[6:7], off offset:{896*e - 3584}{wflag}")
            A("s_mov_b64 exec, -1")
        if warm1:
            A("s_cmp_lg_u32 s3, 3\ns_cbranch_scc1 L_aux_nowarm")
            A("buffer_load_dwordx4 v[160:163], v4, s[8:11], 0 offen sc1")
            A("buffer_load_dwordx4 v[164:167], v5, s[8:11], 0 offen offset:64 sc1")
            A.label("L_aux_nowarm")
        stamp(5)
    A("s_waitcnt lgkmcnt(0)")
    A("v_readfirstlane_b32 s1, v29")
    if not ffn_first: wo_loads()
    A("s_cmp_lg_u32 s3, 0\ns_cbranch_scc1 L_aux_perm")
    A("v_mov_b32 v32, 0")
    A("s_cmp_gt_u32 s5, 27\ns_cbranch_scc1 L_aux_hw")
    A(f"s_mul_i32 s7, s4, 28\ns_add_u32 s7, s7, s5\ns_lshl_b32 s7, s7, 8\ns_add_u32 s7, s7, {WS_PF}\ns_add_u32 s18, s8, s7\ns_addc_u32 s19, s9, 0")
    gather64("L_aux_gf", 18)
    A(f"v_add_f32_dpp v13, v13, v13 row_ror:8 {DPPM}")
    swapadd(16, 13, 11)
    A("v_mov_b32 v11, v13\nv_permlane32_swap_b32 v13, v11")
    A("v_cvt_pk_bf16_f32 v34, v13, v11\nv_lshlrev_b32 v32, 16, v34\nv_and_b32 v33, 0xffff0000, v34")
    A(f"v_mul_f32 v34, {f32(-LOG2E)}, v32\nv_exp_f32 v34, v34\nv_add_f32 v34, 1.0, v34\nv_rcp_f32 v34, v34\nv_mul_f32 v32, v32, v34")
    round_bf16(32, 34)
    A("v_mul_f32 v32, v32, v33")
    A(f"v_mov_b32_dpp v33, v32 quad_perm:[1,1,3,3] {DPPM}")
    A("v_cvt_pk_bf16_f32 v32, v32, v33")
    A.label("L_aux_hw")
    A(f"v_lshlrev_b32 v33, 1, v0\nv_add_u32 v33, {L_AT + 96}, v33\nv_mov_b32 v26, {F_H}")
    A("s_mov_b64 exec, 0x55")
    A("ds_write_b32 v33, v32")
    A("s_mov_b64 exec, 1\nds_write_b32 v26, v27\ns_mov_b64 exec, -1")
    stamp(6)
    A.label("L_aux_perm")
    if ffn_first: wo_loads()
    A(f"s_mov_b32 s58, 0x0c0c0400\ns_mov_b32 s59, 0x04000c0c\ns_mov_b32 s62, {f32(LOG2E/16)}\ns_mul_i32 s64, s6, 3\ns_mov_b64 s[66:67], -1")
    A("s_mov_b32 s68, 0xaaaaaaaa\ns_mov_b32 s69, 0xaaaaaaaa\ns_mov_b32 s48, 0\ns_mov_b32 s49, -1")
    if stamps: A("s_mov_b32 s72, 0\ns_mov_b32 s74, 0")
    FB2 = 64
    A("s_waitcnt vmcnt(0)")
    for p in range(4):
        ra = OW + 8 * p; rb = ra + 4
        for q in range(4):
            A(f"v_perm_b32 v{FB2 + 4*(2*q) + p}, v{rb+q}, v{ra+q}, s20")
            A(f"v_perm_b32 v{FB2 + 4*(2*q+1) + p}, v{rb+q}, v{ra+q}, s21")
    stamp(7)
    if h1p < 4: A(f"s_cmp_lt_u32 s3, {4-h1p}\ns_cbranch_scc1 L_aux_h1done")
    A(f"v_mov_b32 v26, {F_ST}")
    lds_wait("L_aux_wst", "s_cmp_lt_u32 s7, 4", cnt="s23", tmp="v28", addr="v26")
    A(f"v_mov_b32 v26, {F_O}")
    stamp(8)
    if stagger1:
        A("s_sub_u32 s7, 3, s3")
        A.label("L_aux_stg")
        A("s_cmp_eq_u32 s7, 0\ns_cbranch_scc1 L_aux_p1")
        A(f"s_sleep {stagger1}\ns_sub_u32 s7, s7, 1\ns_branch L_aux_stg")
    A.label("L_aux_p1")
    P = 128
    A("s_mov_b64 exec, s[66:67]")
    A(f"buffer_load_dwordx4 v[{P}:{P+3}], v4, s[8:11], 0 offen sc1")
    A(f"buffer_load_dwordx4 v[{P+4}:{P+7}], v4, s[8:11], 0 offen offset:16 sc1")
    A(f"buffer_load_dwordx4 v[{P+8}:{P+11}], v5, s[8:11], 0 offen offset:64 sc1")
    A("ds_read_b32 v28, v26")
    A("s_add_u32 s23, s23, 1")
    A("s_waitcnt lgkmcnt(0)")
    A("v_readfirstlane_b32 s7, v28")
    A("s_cmp_lg_u32 s7, 0\ns_cbranch_scc1 L_aux_h1done")
    A(f"s_cmp_gt_u32 s23, {spin_max}\ns_cbranch_scc1 L_end")
    A("s_waitcnt vmcnt(0)")
    T = P + 12
    for k in range(3):
        r = P + 4 * k
        A(f"v_perm_b32 v{T+2*k}, v{r+1}, v{r}, s58\nv_perm_b32 v{T+1+2*k}, v{r+3}, v{r+2}, s59")
    A(f"v_add3_u32 v{T}, v{T}, v{T+1}, v{T+2}\nv_add3_u32 v{T+3}, v{T+3}, v{T+4}, v{T+5}\nv_add_u32 v{T}, v{T}, v{T+3}")
    A(f"v_cmp_ne_u32 s[66:67], s64, v{T}")
    A("s_cmp_lg_u64 s[66:67], 0")
    if h1sleep:
        A(f"s_cbranch_scc0 L_aux_p1d\ns_sleep {h1sleep}\ns_branch L_aux_p1")
        A.label("L_aux_p1d")
    else:
        A("s_cbranch_scc1 L_aux_p1")
    A("s_mov_b64 exec, -1")
    stamp(9)
    M_, L_, X_, Y_ = T + 1, T + 2, T + 3, T + 4
    A(f"v_cndmask_b32 v{M_}, v{P+8}, v{P+10}, s[68:69]\nv_cndmask_b32 v{L_}, v{P+9}, v{P+11}, s[68:69]")
    A(f"v_and_b32 v{M_}, 0xffff0000, v{M_}")
    A(f"v_max_f32_dpp v{X_}, v{M_}, v{M_} quad_perm:[2,3,0,1] {DPPM}")
    A(f"v_max_f32_dpp v{X_}, v{X_}, v{X_} row_ror:4 {DPPM}")
    A(f"v_max_f32_dpp v{X_}, v{X_}, v{X_} row_ror:8 {DPPM}")
    swapadd(16, X_, Y_, "max")
    swapadd(32, X_, Y_, "max")
    A(f"v_sub_f32 v{M_}, v{M_}, v{X_}\nv_mul_f32 v{M_}, s62, v{M_}\nv_exp_f32 v{M_}, v{M_}")
    A(f"v_mul_f32 v{L_}, v{L_}, v{M_}")
    for i in range(8):
        A(f"v_mul_f32 v{P+i}, v{P+i}, v{M_}")
    A(f"v_add_f32_dpp v{L_}, v{L_}, v{L_} quad_perm:[2,3,0,1] {DPPM}")
    for i in range(4):
        A(f"v_permlane32_swap_b32 v{P+i}, v{P+4+i}")
    A(f"v_add_f32_dpp v{L_}, v{L_}, v{L_} row_ror:4 {DPPM}")
    A(f"v_pk_add_f32 {pr(P)}, {pr(P)}, {pr(P+4)}\nv_pk_add_f32 {pr(P+2)}, {pr(P+2)}, {pr(P+6)}")
    A(f"v_add_f32_dpp v{L_}, v{L_}, v{L_} row_ror:8 {DPPM}")
    A(f"v_permlane16_swap_b32 v{P}, v{P+2}\nv_permlane16_swap_b32 v{P+1}, v{P+3}")
    A(f"v_mov_b32 v{Y_}, v{L_}")
    A(f"v_pk_add_f32 {pr(P)}, {pr(P)}, {pr(P+2)}")
    A(f"v_permlane16_swap_b32 v{L_}, v{Y_}\nv_add_f32 v{L_}, v{L_}, v{Y_}")
    for mod in ("quad_perm:[2,3,0,1]", "row_ror:4", "row_ror:8"):
        A(f"v_add_f32_dpp v{P}, v{P}, v{P} {mod} {DPPM}")
        A(f"v_add_f32_dpp v{P+1}, v{P+1}, v{P+1} {mod} {DPPM}")
        if mod == "quad_perm:[2,3,0,1]":
            swapadd(32, L_, Y_)
            A(f"v_rcp_f32 v{L_}, v{L_}")
    A(f"v_mul_f32 v{P}, v{P}, v{L_}\nv_mul_f32 v{P+1}, v{P+1}, v{L_}\nv_cvt_pk_bf16_f32 v{P}, v{P}, v{P+1}")
    A("s_mov_b32 s66, 0x00030003\ns_mov_b32 s67, 0x00030003\ns_mov_b64 exec, s[66:67]")
    A(f"ds_write_b32 v10, v{P}")
    A("s_mov_b64 exec, 1")
    A("ds_write_b32 v26, v27")
    A.label("L_aux_h1done")
    A("s_mov_b64 exec, -1")
    A(f"v_mov_b32 v26, {F_O}")
    A.label("L_aux_w3")
    A("ds_read_b64 v[24:25], v26")
    A("ds_read_b128 v[28:31], v9")
    A("s_add_u32 s23, s23, 1")
    A("s_waitcnt lgkmcnt(0)")
    A("v_and_b32 v24, v24, v25")
    A("v_readfirstlane_b32 s7, v24")
    A(f"s_cmp_gt_u32 s23, {spin_max}\ns_cbranch_scc1 L_end")
    A("s_cmp_eq_u32 s7, 0\ns_cbranch_scc1 L_aux_w3")
    stamp(10)
    for i in range(8):
        A(f"v_mfma_f32_16x16x32_bf16 v[{96+4*i}:{99+4*i}], v[28:31], v[{FB2+4*i}:{FB2+4*i+3}], 0")
    for k in range(4):
        A(f"v_cndmask_b32 v{32+k}, v{96+4*k}, v{112+4*k}, s[48:49]")
    for k in range(4):
        A(f"v_perm_b32 v{32+k}, v{32+k}, v12, s{12+k}")
    if fast2:
        A("s_cmp_lg_u32 s1, 0\ns_cbranch_scc1 L_aux_st1")
        A("buffer_store_dwordx4 v[32:35], v61, s[8:11], 0 offen " + h2st)
        A("buffer_store_dwordx4 v[32:35], v62, s[8:11], 0 offen")
        A("s_branch L_aux_st2")
        A.label("L_aux_st1")
    A("buffer_store_dwordx4 v[32:35], v8, s[8:11], 0 offen sc1")
    A.label("L_aux_st2")
    A(f"v_mov_b32 v26, {F_PUB}")
    A("s_mov_b64 exec, 1\nds_add_u32 v26, v27\ns_mov_b64 exec, -1")
    stamp(11)
    if wbl:
        A(f"s_cmp_lg_u32 s3, 0\ns_cbranch_scc1 L_aux_nowb\ns_cmp_lt_u32 s5, {32 - wbl}\ns_cbranch_scc1 L_aux_nowb")
        A("buffer_wbl2 sc1")
        A.label("L_aux_nowb")
    if stamps:
        A("s_add_u32 s3, s3, 4")
    stamps_out(range(12), 63, "s3")
    if probe:
        A("s_lshl_b32 s7, s2, 10\ns_lshl_b32 s40, s3, 8\ns_add_u32 s7, s7, s40\ns_add_u32 s7, s7, 0x600000 - 1024\nv_lshlrev_b32 v1, 2, v0\nv_add_u32 v1, s7, v1")
        A("buffer_store_dword v170, v1, s[8:11], 0 offen")
    A.label("L_end")
    A("s_endpgm")
    A.raw('.section .rodata,"a"\n.p2align 6')
    A.raw(f".amdhsa_kernel {KNAME}\n  .amdhsa_next_free_vgpr 192\n  .amdhsa_next_free_sgpr 102\n  .amdhsa_accum_offset 192\n  .amdhsa_group_segment_fixed_size 0\n  .amdhsa_kernarg_size 96\n  .amdhsa_user_sgpr_count 2\n  .amdhsa_user_sgpr_kernarg_segment_ptr 1\n  .amdhsa_system_sgpr_workgroup_id_x 1\n.end_amdhsa_kernel")
    return E.text()

if __name__ == "__main__":
    out = sys.argv[1] if len(sys.argv) > 1 else "recurrent_scan__sliding_block_cached__swiglu_ffn__decode.s"
    kw = {}
    for a in sys.argv[2:]:
        k, v = a.split("=", 1)
        kw[k] = eval(v)
    open(out, "w").write(gen(**kw))
```

```python
import sys
sys.path.insert(0, "dev")
from emit import Emitter
import struct

KNAME = "recurrent_scan__sliding_block_cached__swiglu_ffn__decode_kernel"
HEADER = open("recurrent_scan__sliding_block_cached__swiglu_ffn__decode.s.ref").read().split("; Override launch geometry")[0]

WS_PF    = 0x20000
WS_Q     = 0x80000
WS_QB    = 0x90000
WS_H1B   = 0x300000
WS_H1    = 0x100000
WS_H2    = 0x200000
WS_DBG   = 0x400000
WS_SIZE  = 0x1000000
OOB      = 0x7ffffff0
L_Q, L_S, L_AT, L_F, L_P = 0x000, 0x400, 0xC00, 0xC80, 0x1000
F_SC, F_FAST, F_O, F_H, F_PUB, F_ST, F_VI, F_KI, F_Q, F_P = [4 * i for i in range(10)]
LOG2E = 1.4426950408889634
def f32(x): return "0x%08x" % struct.unpack("<I", struct.pack("<f", x))[0]
DPPM = "row_mask:0xf bank_mask:0xf"
def pr(i): return f"v[{i}:{i+1}]"

def gen(prew=False, qslow=1, gpos=16, kipos=16, gdelay=0, stamps=False, wflag=" nt", tflag=" nt", stagger1=2, stagger2=3, spin_max=1 << 18, kprio=1, vprio=3, kprio2=3, vprio2=2,
        kdelay=0, fdelay=4, wk=7, wv=8, kdrain=7, ilv=1, rsleep=4, qdelay=40, kisleep=1, visleep=1, warm1=True, force_slow=False,
        amp=None, tries=False, mask=True, h1p=4, h1sleep=0, smw=1, ffw=0, vwo=0, noq=0):
    E = Emitter()
    A = E
    def spair(i):
        return 88 + 2 * i if i < 7 else 70 + 2 * (i - 7)
    def stamp(i):
        if stamps:
            p = spair(i)
            A(f"s_memrealtime s[{p}:{p+1}]")
    def stamps_out(idx, vreg):
        if not stamps: return
        A("s_waitcnt lgkmcnt(0)")
        for i in idx:
            A(f"v_writelane_b32 v{vreg}, s{spair(i)}, {i}")
        A(f"s_lshl_b32 s7, s2, 10\ns_lshl_b32 s40, s3, 6\ns_add_u32 s7, s7, s40\ns_add_u32 s7, s7, {WS_DBG}")
        A(f"v_lshlrev_b32 v1, 2, v0\nv_add_u32 v1, s7, v1\nv_cmp_gt_u32 vcc, 16, v0\nv_mov_b32 v2, {OOB}\nv_cndmask_b32 v1, v2, v1, vcc")
        A(f"buffer_store_dword v{vreg}, v1, s[8:11], 0 offen")

    def allreduce16(regs, op="add"):
        for mod in ("quad_perm:[1,0,3,2]", "quad_perm:[2,3,0,1]", "row_ror:4", "row_ror:8"):
            for r in regs:
                A(f"v_{op}_f32_dpp v{r}, v{r}, v{r} {mod} {DPPM}")

    def wave_sum_to_sgpr(r, s):
        allreduce16([r])
        A(f"v_add_f32_dpp v{r}, v{r}, v{r} row_bcast:15 row_mask:0xa bank_mask:0xf")
        A(f"v_add_f32_dpp v{r}, v{r}, v{r} row_bcast:31 row_mask:0xc bank_mask:0xf")
        A(f"v_readlane_b32 s{s}, v{r}, 63")

    def round_bf16(r, t):
        A(f"v_cvt_pk_bf16_f32 v{t}, v{r}, v{r}")
        A(f"v_and_b32 v{r}, 0xffff0000, v{t}")

    def swapadd(kind, r, t, op="add"):
        A(f"v_mov_b32 v{t}, v{r}\nv_permlane{kind}_swap_b32 v{r}, v{t}\nv_{op}_f32 v{r}, v{r}, v{t}")

    def lds_wait(label, cmp, off, cnt, tmp, addr, sleep=0):
        if sleep:
            A(f"s_branch {label}_e")
            A.label(label)
            A(f"s_sleep {sleep}")
            A.label(label + "_e")
        else:
            A.label(label)
        A(f"ds_read_b32 {tmp}, {addr}" + (f" offset:{off}" if off else ""))
        A(f"s_add_u32 {cnt}, {cnt}, 1")
        A("s_waitcnt lgkmcnt(0)")
        A(f"v_readfirstlane_b32 s7, {tmp}")
        A(f"s_cmp_gt_u32 {cnt}, {spin_max}\ns_cbranch_scc1 L_end")
        A(f"{cmp}\ns_cbranch_scc1 {label}")

    def lds_inc(addr, one, off):
        A(f"s_mov_b64 exec, 1\nds_add_u32 {addr}, {one}" + (f" offset:{off}" if off else "") + "\ns_mov_b64 exec, -1")

    def epoch():
        A("s_mul_i32 s6, s6, 1664525\ns_add_u32 s6, s6, 1013904223\ns_or_b32 s6, s6, 1")
        A("v_mov_b32 v12, s6")

    NPW = 5 if prew else 0
    BS, CS = (17, 12) if ilv else (12, 16)
    NREC = (15 << BS) + 4096

    A.raw(HEADER.rstrip())
    A.raw("; @launch grid=(256,1,1) block=(512,1,1) lds=8192")
    A.raw('.amdgcn_target "amdgcn-amd-amdhsa--gfx950"')
    A.raw(".text")
    A.raw(f".globl {KNAME}\n.p2align 8\n.type {KNAME},@function\n{KNAME}:")
    A("s_cmp_ge_u32 s2, 256")
    A("s_cbranch_scc1 L_end")
    A("s_load_dwordx16 s[16:31], s[0:1], 0")
    A("s_load_dwordx8 s[32:39], s[0:1], 64")
    stamp(0)
    A("v_lshrrev_b32 v1, 6, v0")
    A("v_and_b32 v0, 63, v0")
    A("v_readfirstlane_b32 s3, v1")
    A("s_and_b32 s4, s2, 7")
    A("s_lshr_b32 s5, s2, 3")
    A("v_and_b32 v2, 15, v0")
    A("v_lshrrev_b32 v3, 4, v0")
    A("s_cmp_lt_u32 s3, 4")
    A("s_cbranch_scc1 L_k")

    WB = 64
    XP = 16
    A(f"s_setprio {vprio}")
    A("s_sub_u32 s3, s3, 4")
    A("s_mov_b32 s42, 896\ns_mov_b32 s43, 0x20000")
    A("s_mov_b32 s63, 0\ns_cmp_gt_u32 s3, 1\ns_cbranch_scc1 L_v_b0")
    A("s_cmp_eq_u32 s3, 1\ns_cbranch_scc1 L_pro_q")
    A("s_cmp_gt_u32 s5, 27\ns_cbranch_scc1 L_v_b0")
    A("s_mul_i32 s59, s4, 28\ns_add_u32 s59, s59, s5\ns_lshr_b32 s63, s59, 3\ns_movk_i32 s48, 3584\ns_mov_b32 s46, 1605632\ns_and_b32 s62, s59, 3")
    A("s_branch L_pro_c")
    A.label("L_pro_q")
    A("s_and_b32 s62, s5, 3\ns_lshl_b32 s63, s4, 3\ns_lshr_b32 s45, s5, 2\ns_add_u32 s63, s63, s45\ns_movk_i32 s48, 0x2000\ns_mov_b32 s46, 3670016")
    A("s_mov_b32 s59, 0x80000000")
    A.label("L_pro_c")
    A("s_mul_i32 s7, s62, 112\ns_mul_i32 s44, s7, s48\ns_lshl_b32 s45, s63, 7\ns_add_u32 s44, s44, s45\ns_sub_u32 s46, s46, s44")
    A("s_lshl_b32 s7, s7, 1\ns_mul_i32 s45, s48, 14")
    A("v_and_b32 v14, 7, v0\nv_lshrrev_b32 v15, 3, v0")
    A("v_mul_u32_u24 v5, s45, v15\nv_lshl_add_u32 v5, v14, 4, v5")
    A("v_mul_u32_u24 v4, 28, v15\nv_add_u32 v4, s7, v4\nv_lshlrev_b32 v1, 4, v0")
    A("s_mov_b32 s62, s59")
    for k in range(2, 14):
        A(f"s_add_u32 s{47+k}, s{46+k}, s48")
    A("s_mov_b32 s47, 0x20000\ns_mov_b32 s63, 1")
    A("s_bitcmp1_b32 s62, 2")
    A("s_waitcnt lgkmcnt(0)")
    A("s_cselect_b64 s[28:29], s[30:31], s[28:29]")
    A("s_cmp_lt_i32 s62, 0")
    A("s_cselect_b64 s[28:29], s[22:23], s[28:29]")
    A("s_mov_b32 s40, s16\ns_mov_b32 s41, s17")
    A("s_add_u32 s44, s28, s44\ns_addc_u32 s45, s29, 0")
    A("buffer_load_dwordx4 v[24:27], v1, s[40:43], 0 offen")
    A(f"buffer_load_dwordx4 v[{XP}:{XP+3}], v4, s[40:43], 0 offen")
    A(f"buffer_load_dwordx3 v[{XP+4}:{XP+6}], v4, s[40:43], 0 offen offset:16")
    A("s_cmp_lt_i32 s62, 0\ns_cbranch_scc1 L_v_tl")
    A("s_load_dword s6, s[38:39], 0")
    A("s_barrier")
    if fdelay: A(f"s_sleep {fdelay}")
    A.label("L_v_tl")
    for k in range(14):
        r = WB + 4 * k
        A(f"buffer_load_dwordx4 v[{r}:{r+3}], v5, s[44:47], {('s%d' % (47+k)) if k else '0'} offen{tflag}")
    if prew:
        A(f"s_mov_b32 s8, s38\ns_mov_b32 s9, s39\ns_mov_b32 s10, {WS_SIZE}\ns_mov_b32 s11, 0x20000")
        A(f"s_lshl_b32 s7, s4, 5\ns_add_u32 s7, s7, s5\ns_lshl_b32 s0, s7, 8\ns_add_u32 s0, s0, {WS_Q}\ns_lshl_b32 s7, s7, 12\ns_add_u32 s7, s7, {WS_H1}")
        A(f"s_cmp_lt_i32 s62, 0\ns_cselect_b32 s0, s0, {WS_SIZE}\ns_cselect_b32 s7, s7, {WS_SIZE}")
        A("v_mov_b32 v28, 0\nv_mov_b32 v29, 0\nv_mov_b32 v30, 0\nv_mov_b32 v31, 0\nv_lshlrev_b32 v6, 2, v0")
        A("buffer_store_dword v28, v6, s[8:11], s0 offen")
        for i in range(4 if prew else 0):
            A(f"buffer_store_dwordx4 v[28:31], v1, s[8:11], s7 offen offset:{1024*i}")
    A("s_cmp_ge_i32 s62, 0\ns_cbranch_scc1 L_v")
    A.label("L_v_b0")
    A("s_waitcnt lgkmcnt(0)")
    A("s_load_dword s6, s[38:39], 0")
    A("s_barrier")
    A.label("L_v")
    VB = 128
    FA, ONE = "v7", "v8"
    A(f"s_mov_b32 s8, s38\ns_mov_b32 s9, s39\ns_mov_b32 s10, {WS_SIZE}\ns_mov_b32 s11, 0x20000")
    A("s_mov_b32 s40, s16\ns_mov_b32 s41, s17")
    A(f"s_lshl_b32 s0, s4, 25\ns_add_u32 s0, s0, 0x1e00000\ns_lshl_b32 s7, s5, {CS}\ns_add_u32 s0, s0, s7")
    A(f"s_add_u32 s64, s20, s0\ns_addc_u32 s65, s21, 0\ns_mov_b32 s66, {NREC}\ns_mov_b32 s67, 0x20000\ns_mov_b32 s68, {8<<BS}\ns_mov_b32 s69, 0")
    A("s_mov_b32 s32, s34\ns_mov_b32 s33, s35\ns_mov_b32 s34, 896\ns_mov_b32 s35, 0x20000")
    A("s_getreg_b32 s17, hwreg(HW_REG_XCC_ID, 0, 3)")
    if stamps: A("v_mov_b32 v125, 0\ns_mov_b32 s90, 0\ns_mov_b32 s98, 0\ns_mov_b32 s72, 0\ns_mov_b32 s74, 0\ns_mov_b32 s76, 0")
    A("s_mov_b32 s16, 0x05040100\ns_mov_b32 s18, 0x07060302")
    A("s_mov_b32 s19, 0x0c0c0400\ns_mov_b32 s39, 0x04000c0c")
    A("s_mov_b32 s12, 0x07060500\ns_mov_b32 s13, 0x07060501\ns_mov_b32 s14, 0x07060502\ns_mov_b32 s15, 0x07060503")
    A(f"v_mov_b32 {FA}, {L_F}\nv_mov_b32 {ONE}, 1\nv_mov_b32 v11, {OOB}")
    A("s_cmp_eq_u32 s63, 0\ns_cbranch_scc1 L_v_nt")
    A(f"s_and_b32 s45, s62, 0xf8\ns_lshl_b32 s45, s45, 8\ns_and_b32 s46, s62, 7\ns_lshl_b32 s46, s46, 5\ns_add_u32 s45, s45, s46\ns_add_u32 s45, s45, {WS_PF}")
    A(f"s_lshl_b32 s44, s4, 13\ns_lshl_b32 s46, s5, 8\ns_add_u32 s44, s44, s46\ns_add_u32 s44, s44, {WS_Q}")
    A(f"s_cmp_lt_i32 s62, 0\ns_cselect_b32 s44, s44, s45\ns_cselect_b32 s45, 5, 8\ns_cselect_b32 s0, 0, {WS_SIZE}\ns_cselect_b32 s1, {WS_QB - WS_Q}, 0")
    A("v_lshrrev_b32 v13, 5, v0\nv_lshlrev_b32 v13, 4, v13\nv_lshlrev_b32 v10, s45, v14\nv_add3_u32 v10, v10, v13, s44")
    A("v_and_b32 v13, 0x18, v0\nv_cmp_eq_u32 vcc, 0, v13\nv_cndmask_b32 v10, v11, v10, vcc")
    A(f"s_waitcnt vmcnt({16+NPW})")
    for p in range(4):
        A(f"v_lshlrev_b32 v{32+2*p}, 16, v{24+p}\nv_and_b32 v{33+2*p}, 0xffff0000, v{24+p}")
    A(f"v_pk_add_f32 {pr(46)}, {pr(32)}, {pr(34)}\nv_pk_add_f32 {pr(48)}, {pr(36)}, {pr(38)}\nv_pk_add_f32 {pr(46)}, {pr(46)}, {pr(48)}\nv_add_f32 v46, v46, v47")
    wave_sum_to_sgpr(46, 48)
    A(f"v_mov_b32 v30, {f32(1.0/448)}\nv_mul_f32 v46, s48, v30")
    A("v_cmp_gt_u32 vcc, 56, v0")
    for p in range(4):
        A(f"v_pk_add_f32 {pr(32+2*p)}, {pr(32+2*p)}, {pr(46)} op_sel_hi:[1,0] neg_lo:[0,1] neg_hi:[0,1]")
    A(f"v_pk_mul_f32 {pr(24)}, {pr(32)}, {pr(32)}")
    for p in range(1, 4):
        A(f"v_pk_fma_f32 {pr(24)}, {pr(32+2*p)}, {pr(32+2*p)}, {pr(24)}")
    A("v_add_f32 v24, v24, v25\nv_cndmask_b32 v24, 0, v24, vcc")
    wave_sum_to_sgpr(24, 48)
    A("v_mul_f32 v24, s48, v30")
    A("v_cvt_pk_bf16_f32 v25, v46, v24\nv_lshlrev_b32 v46, 16, v25\nv_and_b32 v24, 0xffff0000, v25")
    A(f"v_add_f32 v24, {f32(1e-5)}, v24")
    round_bf16(24, 25)
    A("v_sqrt_f32 v24, v24")
    round_bf16(24, 25)
    A("v_rcp_f32 v28, v24")
    A(f"s_waitcnt vmcnt({14+NPW})")
    for p in range(7):
        A(f"v_lshlrev_b32 v{32+2*p}, 16, v{XP+p}\nv_and_b32 v{33+2*p}, 0xffff0000, v{XP+p}")
    for p in range(7):
        A(f"v_pk_add_f32 {pr(32+2*p)}, {pr(32+2*p)}, {pr(46)} op_sel_hi:[1,0] neg_lo:[0,1] neg_hi:[0,1]")
    for p in range(7):
        A(f"v_cvt_pk_bf16_f32 v{XP+p}, v{32+2*p}, v{33+2*p}")
    for p in range(7):
        A(f"v_lshlrev_b32 v{32+2*p}, 16, v{XP+p}\nv_and_b32 v{33+2*p}, 0xffff0000, v{XP+p}")
    for p in range(7):
        A(f"v_pk_mul_f32 {pr(46+2*p)}, {pr(32+2*p)}, {pr(28)} op_sel_hi:[1,0]")
    for p in range(7):
        A(f"v_pk_fma_f32 {pr(32+2*p)}, {pr(46+2*p)}, {pr(24)}, {pr(32+2*p)} op_sel_hi:[1,0,1] neg_lo:[1,0,0] neg_hi:[1,0,0]")
    for p in range(7):
        A(f"v_pk_fma_f32 {pr(46+2*p)}, {pr(32+2*p)}, {pr(28)}, {pr(46+2*p)} op_sel_hi:[1,0,1]")
    for p in range(7):
        A(f"v_cvt_pk_bf16_f32 v{XP+p}, v{46+2*p}, v{47+2*p}")
    A("s_waitcnt lgkmcnt(0)")
    epoch()
    A("s_lshl_b32 s17, s17, 29\ns_and_b32 s7, s6, 0x1fffffff\ns_or_b32 s17, s17, s7")
    A("s_cmp_lt_i32 s62, 0\ns_cselect_b32 s7, s17, s6\nv_mov_b32 v124, s7")
    for i in range(8):
        A(f"v_mov_b32 v{32+i}, 0")
    for u in range(7):
        A(f"s_waitcnt vmcnt({14 - (2*u + 2) + NPW})")
        ra = WB + 8 * u; rb = ra + 4
        for q in range(4):
            A(f"v_perm_b32 v{40+2*q}, v{rb+q}, v{ra+q}, s16\nv_perm_b32 v{41+2*q}, v{rb+q}, v{ra+q}, s18")
        for q in range(8):
            A(f"v_dot2c_f32_bf16 v{32+q}, v{40+q}, v{XP+u}")
    for i in range(4):
        A(f"v_permlane32_swap_b32 v{32+i}, v{36+i}")
    A(f"v_pk_add_f32 {pr(32)}, {pr(32)}, {pr(36)}\nv_pk_add_f32 {pr(34)}, {pr(34)}, {pr(38)}")
    for i in range(4):
        A(f"v_add_f32_dpp v{32+i}, v{32+i}, v{32+i} row_ror:8 {DPPM}")
    for i in range(4):
        A(f"v_mov_b32 v{36+i}, v{32+i}")
    for i in range(4):
        A(f"v_permlane16_swap_b32 v{32+i}, v{36+i}")
    A(f"v_pk_add_f32 {pr(32)}, {pr(32)}, {pr(36)}\nv_pk_add_f32 {pr(34)}, {pr(34)}, {pr(38)}")
    for i in range(4):
        A(f"v_perm_b32 v{32+i}, v{32+i}, v124, s{12+i}")
    if prew: A("s_waitcnt vmcnt(0)")
    A("buffer_store_dwordx4 v[32:35], v10, s[8:11], s0 offen")
    A("buffer_store_dwordx4 v[32:35], v10, s[8:11], s1 offen sc1")
    stamp(1)
    A("s_branch L_v_t")
    A.label("L_v_nt")
    A("s_waitcnt lgkmcnt(0)")
    epoch()
    A.label("L_v_t")
    A(f"v_lshrrev_b32 v5, 3, v2\nv_and_b32 v14, 7, v2\nv_lshlrev_b32 v6, 4, v14\nv_lshl_add_u32 v6, v5, {BS+2}, v6\nv_lshl_add_u32 v6, v3, {BS}, v6")
    A("s_lshl_b32 s7, s3, 7\nv_add_u32 v6, s7, v6")
    A("s_lshl_b32 s7, s2, 3\nv_lshlrev_b32 v9, 1, v3\nv_add_u32 v9, s7, v9")
    A("buffer_load_ushort v126, v9, s[40:43], 0 offen")
    A(f"s_lshl_b32 s7, s4, 5\ns_lshl_b32 s0, s3, 3\ns_add_u32 s7, s7, s0\ns_lshl_b32 s7, s7, 12\ns_lshl_b32 s0, s5, 7\ns_add_u32 s7, s7, s0\ns_add_u32 s7, s7, {WS_H1}")
    A("s_mov_b32 s80, 0\ns_mov_b32 s81, -1\ns_mov_b32 s82, 0xff00ff00\ns_mov_b32 s83, 0xff00ff00\ns_mov_b32 s84, 0xff000000\ns_mov_b32 s85, 0xff00ff00")
    A("v_lshrrev_b32 v16, 1, v3\nv_and_b32 v17, 1, v3\nv_lshlrev_b32 v121, 5, v17\nv_lshl_add_u32 v121, v16, 4, v121\nv_mov_b32 v17, 64\nv_cndmask_b32 v121, v121, v17, s[82:83]")
    A("v_lshl_add_u32 v121, v14, 12, v121\nv_add_u32 v121, s7, v121\nv_cndmask_b32 v121, v121, v11, s[84:85]")
    A("v_cmp_eq_u32 vcc, 0, v2\nv_cndmask_b32 v9, v11, v9, vcc")
    A(f"s_lshl_b32 s7, s2, 13\ns_add_u32 s7, s7, {WS_H2}\nv_lshlrev_b32 v122, 4, v0\nv_add_u32 v122, s7, v122")
    for k in range(8):
        A(f"s_add_u32 s7, s4, {k}\ns_and_b32 s7, s7, 7\ns_lshl_b32 s{20+k}, s7, 10")
    A(f"s_lshl_b32 s87, s6, 3\nv_lshlrev_b32 v120, 4, v0\nv_add_u32 v120, {L_P}, v120")
    lds_wait("L_v_wki", "s_cmp_lt_u32 s7, 4", F_KI, "s69", "v13", FA, sleep=kisleep)
    stamp(2)
    n = 0
    for sg in range(2):
        for e in range(8):
            r = VB + 32 * sg + 4 * e
            if wv and n >= wv: A(f"s_waitcnt vmcnt({wv-1})")
            A(f"buffer_load_dwordx4 v[{r}:{r+3}], v6, s[64:67], {'0' if sg == 0 else 's68'} offen offset:{512*e} nt")
            n += 1
            if n == 16 - vwo: lds_inc(FA, ONE, F_VI)
    A(f"s_setprio {vprio2}")
    stamp(3)
    FB, OB, PA = 64, 32, 100
    def vperm(sg, p):
        A(f"s_waitcnt vmcnt({16 - (8*sg + 2*p + 2)})")
        ra = VB + 32 * sg + 8 * p; rb = ra + 4
        for q in range(4):
            A(f"v_perm_b32 v{FB + 4*(2*q) + p}, v{rb+q}, v{ra+q}, s16")
            A(f"v_perm_b32 v{FB + 4*(2*q+1) + p}, v{rb+q}, v{ra+q}, s18")
    for p in range(4): vperm(0, p)
    A.label("L_v_wp")
    A(f"ds_read_b32 v13, {FA} offset:{F_P}\nds_read_b32 v14, {FA} offset:{F_FAST}")
    for i in range(3):
        A(f"ds_read_b128 v[{PA+4*i}:{PA+4*i+3}], v120 offset:{1024*i}")
    A("s_add_u32 s69, s69, 1\ns_waitcnt lgkmcnt(0)\nv_readfirstlane_b32 s7, v13")
    A(f"s_cmp_gt_u32 s69, {spin_max}\ns_cbranch_scc1 L_end")
    A("s_cmp_eq_u32 s7, 0\ns_cbranch_scc1 L_v_wp")
    stamp(4)
    A("v_readfirstlane_b32 s61, v14")
    for sg in range(2):
        if sg:
            for p in range(4): vperm(1, p)
        for i in range(8):
            c = "0" if sg == 0 else f"v[{OB+4*i}:{OB+4*i+3}]"
            A(f"v_mfma_f32_16x16x32_bf16 v[{OB+4*i}:{OB+4*i+3}], v[{PA+4*sg}:{PA+4*sg+3}], v[{FB+4*i}:{FB+4*i+3}], {c}")
    stamp(6)
    for i in range(8):
        A(f"v_add_f32_dpp v{112+i}, v{OB+4*i+1}, v{OB+4*i} row_shl:8 {DPPM} bound_ctrl:0")
    for i in range(4):
        A(f"v_cndmask_b32 v{112+i}, v{112+i}, v{116+i}, s[80:81]")
    for i in range(4):
        A(f"v_cndmask_b32 v{112+i}, v{112+i}, v{108+i}, s[82:83]")
    for i in range(4):
        A(f"v_perm_b32 v{112+i}, v{112+i}, v12, s{12 + i}")
    A("s_cmp_lg_u32 s61, 4\ns_cbranch_scc1 L_v_st1")
    A("buffer_store_dwordx4 v[112:115], v121, s[8:11], 0 offen")
    A("s_branch L_v_st2")
    A.label("L_v_st1")
    A(f"s_mov_b32 s7, {WS_H1B - WS_H1}\nbuffer_store_dwordx4 v[112:115], v121, s[8:11], s7 offen sc1")
    A.label("L_v_st2")
    lds_inc(FA, ONE, F_ST)
    stamp(7)
    A("s_cmp_ge_u32 s2, 112\ns_cbranch_scc1 L_v_fin")
    A("s_mov_b64 s[0:1], -1")
    lds_wait("L_v_w2", "s_cmp_lt_u32 s7, 4", F_PUB, "s69", "v13", FA)
    stamp(8)
    if stagger2:
        A("s_mov_b32 s7, s3")
        A.label("L_v_stg2")
        A("s_cmp_eq_u32 s7, 0\ns_cbranch_scc1 L_v_p2")
        A(f"s_sleep {stagger2}\ns_sub_u32 s7, s7, 1\ns_branch L_v_stg2")
    A.label("L_v_p2")
    A("s_mov_b64 exec, s[0:1]")
    for k in range(8):
        A(f"buffer_load_dwordx4 v[{64+4*k}:{67+4*k}], v122, s[8:11], s{20+k} offen sc1")
    A("s_add_u32 s69, s69, 1")
    A(f"s_cmp_gt_u32 s69, {spin_max}\ns_cbranch_scc1 L_end")
    for k in range(8):
        r = 64 + 4 * k
        A(f"s_waitcnt vmcnt({7-k})")
        A(f"v_perm_b32 v{96+2*k}, v{r+1}, v{r}, s19\nv_perm_b32 v{97+2*k}, v{r+3}, v{r+2}, s39")
        if k == 0:
            A("v_add_u32 v112, v96, v97")
        else:
            A(f"v_add3_u32 v112, v112, v{96+2*k}, v{97+2*k}")
    A("v_cmp_ne_u32 s[0:1], s87, v112")
    A("s_cmp_lg_u64 s[0:1], 0")
    A("s_cbranch_scc1 L_v_p2")
    A("s_mov_b64 exec, -1")
    stamp(9)
    for st_ in (16, 8, 4):
        for base in range(64, 64 + st_, 2):
            A(f"v_pk_add_f32 {pr(base)}, {pr(base)}, {pr(base+st_)}")
    A("v_permlane32_swap_b32 v64, v66\nv_permlane32_swap_b32 v65, v67")
    A(f"v_pk_add_f32 {pr(64)}, {pr(64)}, {pr(66)}")
    A("v_permlane16_swap_b32 v64, v65")
    A("v_add_f32 v64, v64, v65")
    for mod in ("quad_perm:[2,3,0,1]", "row_ror:4", "row_ror:8"):
        A(f"v_add_f32_dpp v64, v64, v64 {mod} {DPPM}")
    A(f"v_mov_b32_dpp v68, v64 quad_perm:[1,0,3,2] {DPPM}")
    A("v_cvt_pk_bf16_f32 v65, v64, v68")
    A("v_and_b32 v68, 0xffff0000, v65\nv_lshlrev_b32 v64, 16, v65")
    A(f"v_mul_f32 v66, {f32(-LOG2E)}, v68\nv_exp_f32 v66, v66\nv_add_f32 v66, 1.0, v66\nv_rcp_f32 v66, v66\nv_mul_f32 v66, v68, v66")
    round_bf16(66, 67)
    A("v_mul_f32 v64, v64, v66")
    round_bf16(64, 67)
    A("v_lshlrev_b32 v126, 16, v126\nv_add_f32 v64, v64, v126\nv_cvt_pk_bf16_f32 v64, v64, v64")
    A("buffer_store_short v64, v9, s[32:35], 0 offen")
    stamp(10)
    A("s_cmp_lg_u32 s2, 0\ns_cbranch_scc1 L_v_fin")
    A("v_lshlrev_b32 v13, 24, v0")
    A("buffer_store_dword v12, v13, s[8:11], 0 offen")
    A.label("L_v_fin")
    stamp(11)
    if stamps: A("s_add_u32 s3, s3, 4")
    stamps_out(range(12), 125)
    if amp is not None:
        A("s_sub_u32 s7, s3, 4\ns_or_b32 s7, s2, s7\ns_cmp_lg_u32 s7, 0\ns_cbranch_scc1 L_amp_end")
        A(f"v_readlane_b32 s40, v125, {amp[0]}\nv_readlane_b32 s41, v125, 0\nv_readlane_b32 s42, v125, 11")
        A(f"s_sub_u32 s40, s40, s41\ns_min_u32 s40, s40, 10000\ns_mul_i32 s40, s40, {amp[1]}")
        A.label("L_amp")
        A("s_memrealtime s[44:45]\ns_waitcnt lgkmcnt(0)\ns_sub_u32 s44, s44, s42\ns_cmp_lt_u32 s44, s40\ns_cbranch_scc1 L_amp")
        A.label("L_amp_end")
    A("s_endpgm")

    A.label("L_k")
    KB = 64
    FA, ONE = "v24", "v25"
    if kprio: A(f"s_setprio {kprio}")
    A(f"s_lshl_b32 s6, s4, 25\ns_add_u32 s6, s6, 0x1e00000\ns_lshl_b32 s7, s5, {CS}\ns_add_u32 s6, s6, s7")
    A("v_and_b32 v4, 7, v2\nv_lshlrev_b32 v4, 9, v4\nv_lshrrev_b32 v5, 3, v2\nv_lshl_add_u32 v4, v5, 6, v4\nv_lshl_add_u32 v4, v3, 4, v4")
    A(f"s_lshl_b32 s7, s3, {BS+2}\nv_add_u32 v4, s7, v4")
    A(f"s_mov_b32 s48, {1<<BS}\ns_mov_b32 s49, {2<<BS}\ns_mov_b32 s50, {3<<BS}")
    A(f"s_mov_b32 s42, {NREC}\ns_mov_b32 s43, 0x20000")
    A(f"s_mov_b32 s10, {WS_SIZE}\ns_mov_b32 s11, 0x20000")
    A("v_mov_b32 v8, 0\nv_mov_b32 v9, 0\nv_mov_b32 v10, 0\nv_mov_b32 v11, 0")
    A(f"v_lshlrev_b32 v7, 4, v2\nv_add_u32 v7, {L_AT}, v7")
    A("s_cmp_lg_u32 s3, 0\ns_cbranch_scc1 L_k_noz")
    A("ds_write_b128 v7, v[8:11]")
    A.label("L_k_noz")
    A("s_waitcnt lgkmcnt(0)")
    A("s_add_u32 s40, s18, s6\ns_addc_u32 s41, s19, 0")
    A("s_mov_b32 s8, s38\ns_mov_b32 s9, s39")
    A("s_load_dword s6, s[38:39], 0")
    A("s_barrier")
    so = ["0", "s48", "s49", "s50"]
    loads = []
    for tau in range(4):
        for t in range(4):
            r = KB + 16 * tau + 4 * t
            loads.append(f"buffer_load_dwordx4 v[{r}:{r+3}], v4, s[40:43], {so[tau]} offen offset:{128*t} nt")
    if kdelay: A(f"s_sleep {kdelay}")
    n0 = min(wk, 16) if wk else 16
    for l in loads[:n0]: A(l)
    if stamps: A("v_mov_b32 v63, 0\ns_mov_b32 s100, 0")
    A("s_mov_b32 s20, 0x05040100\ns_mov_b32 s21, 0x07060302")
    A("s_mov_b32 s12, 0x07060500\ns_mov_b32 s13, 0x07060501\ns_mov_b32 s14, 0x07060502\ns_mov_b32 s15, 0x07060503")
    A("s_mov_b32 s58, 0x0c0c0400\ns_mov_b32 s59, 0x04000c0c")
    A("s_lshl_b32 s16, s4, 5\ns_add_u32 s16, s16, s5")
    A("s_mul_i32 s61, s4, 28\ns_min_u32 s7, s5, 27\ns_add_u32 s61, s61, s7")
    A("s_lshl_b32 s44, s4, 9\ns_lshl_b32 s45, s5, 3\ns_add_u32 s44, s44, s45\ns_mul_i32 s44, s44, 896")
    A("s_add_u32 s44, s24, s44\ns_addc_u32 s45, s25, 0")
    A("s_mul_i32 s46, s61, 7168\ns_add_u32 s46, s32, s46\ns_addc_u32 s47, s33, 0")
    A("s_lshl_b32 s7, s3, 8\ns_add_u32 s7, s7, 3584\nv_lshlrev_b32 v11, 4, v2\nv_add_u32 v11, s7, v11")
    A("v_cmp_eq_u32 vcc, 1, v3\nv_mov_b32 v13, 229376\nv_cndmask_b32 v13, 0, v13, vcc\nv_add_u32 v11, v11, v13")
    A("v_cmp_gt_u32 vcc, 2, v3")
    A("v_mov_b32 v6, s46\nv_mov_b32 v13, s44\nv_cndmask_b32 v6, v6, v13, vcc")
    A("v_mov_b32 v7, s47\nv_mov_b32 v13, s45\nv_cndmask_b32 v7, v7, v13, vcc")
    A("v_add_co_u32 v6, vcc, v6, v11\nv_addc_co_u32 v7, vcc, 0, v7, vcc")
    OW = 128
    A("v_lshrrev_b32 v16, 1, v3\nv_lshl_add_u32 v13, v2, 1, v16\ns_lshl_b32 s7, s3, 5\nv_add_u32 v13, s7, v13")
    A(f"s_lshl_b32 s7, s16, 5\ns_add_u32 s7, s7, {WS_H2}\nv_and_b32 v17, 1, v3\nv_lshlrev_b32 v8, 4, v17\nv_lshl_add_u32 v8, v13, 13, v8\nv_add_u32 v8, s7, v8")
    A(f"v_mov_b32 v11, {OOB}\nv_cmp_gt_u32 vcc, 112, v13\nv_cndmask_b32 v8, v11, v8, vcc")
    A("v_and_b32 v13, 7, v13\nv_cmp_eq_u32 vcc, s4, v13\nv_cndmask_b32 v22, v11, v8, vcc\nv_cndmask_b32 v21, v8, v11, vcc")
    A(f"v_bfe_u32 v18, v2, 2, 1\nv_lshlrev_b32 v9, 6, v18\nv_lshl_add_u32 v9, v3, 4, v9\nv_add_u32 v9, {L_AT}, v9")
    A("v_and_b32 v14, 1, v2\nv_lshlrev_b32 v13, 9, v14\nv_bfe_u32 v15, v2, 1, 1\nv_lshl_add_u32 v13, v15, 6, v13\nv_lshl_add_u32 v13, v3, 4, v13")
    A("v_lshlrev_b32 v15, 10, v16\nv_lshl_add_u32 v15, v14, 9, v15\nv_lshl_add_u32 v15, v17, 4, v15")
    A(f"s_lshl_b32 s7, s3, 7\ns_add_u32 s7, s7, {L_S}\nv_add_u32 v15, s7, v15")
    A("v_lshrrev_b32 v17, 1, v2\nv_cmp_eq_u32 s[60:61], v17, v16")
    A(f"v_lshlrev_b32 v18, 9, v18\nv_lshl_add_u32 v18, v14, 7, v18\nv_lshl_add_u32 v18, v3, 5, v18\nv_add_u32 v18, {L_S}, v18")
    A(f"s_lshl_b32 s7, s4, 13\ns_lshl_b32 s44, s3, 11\ns_add_u32 s7, s7, s44\ns_add_u32 s7, s7, {WS_Q}\nv_lshlrev_b32 v23, 4, v0\nv_add_u32 v19, s7, v23")
    A(f"s_lshl_b32 s7, s3, 8\nv_lshlrev_b32 v20, 3, v2\nv_lshl_add_u32 v20, v16, 7, v20\nv_and_b32 v17, 1, v3\nv_lshl_add_u32 v20, v17, 2, v20\nv_add_u32 v20, s7, v20")
    A("s_getreg_b32 s17, hwreg(HW_REG_XCC_ID, 0, 3)")
    A(f"v_add_u32 v23, {L_P}, v23")
    A(f"s_lshl_b32 s7, s16, 12\ns_add_u32 s7, s7, {WS_H1}\nv_and_b32 v14, 1, v0")
    A("v_lshrrev_b32 v17, 1, v0\nv_lshlrev_b32 v17, 7, v17\nv_add_u32 v17, s7, v17\nv_lshl_add_u32 v16, v14, 5, v17")
    A(f"v_lshlrev_b32 v10, 4, v14\nv_lshl_add_u32 v10, v3, 2, v10\nv_add_u32 v10, {L_AT}, v10")
    A(f"v_mov_b32 {FA}, {L_F}\nv_mov_b32 {ONE}, 1")
    A("s_mov_b32 s23, 0")
    for i in range(32):
        A(f"v_mov_b32 v{OW+i}, 0")
    def gload(so):
        A(f"buffer_load_dwordx4 v[32:35], v19, s[8:11], {so} offen sc1")
        A(f"buffer_load_dwordx4 v[36:39], v19, s[8:11], {so} offen offset:1024 sc1")
    for i in range(n0, 16):
        if i == gpos:
            stamp(2)
            gload("0")
        A(f"s_waitcnt vmcnt({wk-1 + (2 if i >= gpos else 0)})")
        A(loads[i])
        if i + 1 == kipos and kipos < 16: lds_inc(FA, ONE, F_KI)
    if gpos >= 16:
        if gdelay:
            if kipos >= 16: lds_inc(FA, ONE, F_KI)
            A(f"s_sleep {gdelay}")
        stamp(2)
        gload("0")
    A("s_waitcnt lgkmcnt(0)")
    epoch()
    A("v_and_b32 v14, 3, v0\nv_lshlrev_b32 v14, 3, v14\nv_bfe_u32 v5, v12, v14, 8")
    A("s_lshl_b32 s17, s17, 29\ns_and_b32 s7, s6, 0x1fffffff\ns_or_b32 s17, s17, s7\nv_mov_b32 v45, 0x1fffffff")
    if kdrain < wk: A(f"s_waitcnt vmcnt({kdrain + 2})")
    if kipos >= 16 and not gdelay: lds_inc(FA, ONE, F_KI)
    stamp(1)
    GB = 24
    A(f"s_waitcnt vmcnt({max(16 - gpos, 0)})")
    A("s_branch L_k_qc")
    A.label("L_k_q")
    A(f"s_and_b32 s7, s23, {qslow}\ns_cmp_eq_u32 s7, {qslow}\ns_cselect_b32 s7, {WS_QB - WS_Q}, 0")
    A("s_mov_b64 exec, s[0:1]")
    gload("s7")
    A("s_mov_b64 exec, -1")
    A(f"s_add_u32 s23, s23, 1\ns_cmp_gt_u32 s23, {spin_max}\ns_cbranch_scc1 L_end")
    A("s_waitcnt vmcnt(0)")
    A.label("L_k_qc")
    A("v_perm_b32 v40, v33, v32, s58\nv_perm_b32 v41, v35, v34, s59\nv_perm_b32 v42, v37, v36, s58\nv_perm_b32 v43, v39, v38, s59")
    A("v_xor_b32 v40, v40, v41\nv_xor_b32 v42, v42, v43\nv_xor_b32 v40, s17, v40\nv_xor_b32 v42, s17, v42\nv_or_b32 v40, v40, v42")
    A("v_and_b32 v41, v45, v40\nv_cmp_ne_u32 s[0:1], 0, v41\nv_cmp_ne_u32 vcc, 0, v40")
    if not noq: A("s_cmp_lg_u64 s[0:1], 0\ns_cbranch_scc1 L_k_q")
    if not force_slow:
        A("s_cbranch_vccnz L_k_mix")
        lds_inc(FA, ONE, F_FAST)
        A.label("L_k_mix")
    if tries: A("v_writelane_b32 v63, s23, 15")
    if mask:
        for i in range(8):
            A(f"v_and_b32 v{32+i}, 0xffffff00, v{32+i}")
    for i in range(4):
        A(f"v_permlane32_swap_b32 v{32+i}, v{36+i}")
    A(f"v_pk_add_f32 {pr(32)}, {pr(32)}, {pr(36)}\nv_pk_add_f32 {pr(34)}, {pr(34)}, {pr(38)}")
    A("v_permlane16_swap_b32 v32, v34\nv_permlane16_swap_b32 v33, v35")
    A(f"v_pk_add_f32 {pr(32)}, {pr(32)}, {pr(34)}\nv_cvt_pk_bf16_f32 v32, v32, v33")
    A("ds_write_b32 v20, v32")
    lds_inc(FA, ONE, F_Q)
    stamp(3)
    lds_wait("L_k_wq", "s_cmp_lt_u32 s7, 4", F_Q, "s23", "v28", FA)
    QB, DB = 32, 48
    if stamps: A("v_mov_b32 v31, v63")
    for t in range(4):
        A(f"ds_read_b128 v[{QB+4*t}:{QB+4*t+3}], v13 offset:{L_Q + 128*t}")
    A("s_waitcnt vmcnt(0) lgkmcnt(0)")
    for t in range(4):
        for tau in range(4):
            r = KB + 16 * tau + 4 * t
            c = "0" if t == 0 else f"v[{DB+4*tau}:{DB+4*tau+3}]"
            A(f"v_mfma_f32_16x16x32_bf16 v[{DB+4*tau}:{DB+4*tau+3}], v[{r}:{r+3}], v[{QB+4*t}:{QB+4*t+3}], {c}")
    A("s_mov_b64 exec, s[60:61]")
    for tau in range(4):
        A(f"ds_write_b128 v15, v[{DB+4*tau}:{DB+4*tau+3}] offset:{32*tau}")
    A(f"s_mov_b64 exec, 1\nds_add_u32 {FA}, {ONE}\ns_mov_b64 exec, -1")
    stamp(4)
    A(f"s_mov_b32 s62, {f32(LOG2E/16)}")
    A(f"s_cmp_lg_u32 s3, {smw}\ns_cbranch_scc1 L_k_nsm")
    lds_wait("L_k_w1", "s_cmp_lt_u32 s7, 4", F_SC, "s23", "v28", FA)
    for part in range(2):
        for sg in range(2):
            for hf in range(2):
                r = 64 + 16 * part + 8 * sg + 4 * hf
                A(f"ds_read_b128 v[{r}:{r+3}], v18 offset:{1024*part + 256*sg + 16*hf}")
    A("s_waitcnt lgkmcnt(0)")
    for i in range(8):
        A(f"v_pk_add_f32 {pr(64+2*i)}, {pr(64+2*i)}, {pr(80+2*i)}")
    for i in range(8):
        A(f"v_cvt_pk_bf16_f32 v{80+i}, v{64+2*i}, v{65+2*i}")
    for i in range(8):
        A(f"v_lshlrev_b32 v{64+2*i}, 16, v{80+i}")
        A(f"v_and_b32 v{65+2*i}, 0xffff0000, v{80+i}")
    A("v_max3_f32 v96, v64, v65, v66\nv_max3_f32 v97, v67, v68, v69\nv_max3_f32 v98, v70, v71, v72\nv_max3_f32 v99, v73, v74, v75")
    A("v_max3_f32 v96, v96, v76, v77\nv_max3_f32 v97, v97, v78, v79\nv_max3_f32 v96, v96, v97, v98\nv_max_f32 v96, v96, v99")
    A(f"v_max_f32_dpp v96, v96, v96 quad_perm:[1,0,3,2] {DPPM}")
    swapadd(16, 96, 97, "max")
    swapadd(32, 96, 97, "max")
    A("v_mul_f32 v97, s62, v96")
    for i in range(16):
        A(f"v_fma_f32 v{64+i}, v{64+i}, s62, -v97")
    for i in range(16):
        A(f"v_exp_f32 v{64+i}, v{64+i}")
    for i in range(8):
        A(f"v_cvt_pk_bf16_f32 v{PA+i}, v{64+2*i}, v{65+2*i}")
    A(f"ds_write_b128 v23, v[{PA}:{PA+3}]\nds_write_b128 v23, v[{PA+4}:{PA+7}] offset:1024")
    for i in range(4):
        A(f"v_pk_add_f32 {pr(64+2*i)}, {pr(64+2*i)}, {pr(72+2*i)}")
    for i in range(2):
        A(f"v_pk_add_f32 {pr(64+2*i)}, {pr(64+2*i)}, {pr(68+2*i)}")
    A("v_pk_add_f32 v[64:65], v[64:65], v[66:67]\nv_add_f32 v98, v64, v65")
    A(f"v_add_f32_dpp v98, v98, v98 quad_perm:[1,0,3,2] {DPPM}")
    swapadd(16, 98, 97)
    swapadd(32, 98, 97)
    A(f"v_mov_b32_dpp v108, v96 row_newbcast:0 {DPPM}\nv_mov_b32_dpp v109, v98 row_newbcast:0 {DPPM}")
    A(f"v_mov_b32_dpp v110, v96 row_newbcast:4 {DPPM}\nv_mov_b32_dpp v111, v98 row_newbcast:4 {DPPM}")
    A("ds_write_b128 v23, v[108:111] offset:2048")
    A(f"ds_write_b32 {FA}, {ONE} offset:{F_P}")
    stamp(6)
    A.label("L_k_nsm")
    lds_wait("L_k_wvi", "s_cmp_lt_u32 s7, 4", F_VI, "s23", "v28", FA, sleep=visleep)
    A(f"s_setprio {kprio2}")
    A("s_mov_b32 s25, 0xffff\ns_cmp_eq_u32 s3, 3\ns_cselect_b32 s24, 0x00ff00ff, -1\ns_cselect_b32 s25, 0xff, s25")
    A("s_mov_b64 exec, s[24:25]")
    for e in range(8):
        A(f"global_load_dwordx4 v[{OW+4*e}:{OW+4*e+3}], v[6:7], off offset:{896*e - 3584}{wflag}")
    A("s_mov_b64 exec, -1")
    stamp(5)
    A(f"s_cmp_eq_u32 s3, {ffw}\ns_cbranch_scc1 L_k_ffn")
    if warm1:
        A("s_cmp_lg_u32 s3, 3\ns_cbranch_scc1 L_k_perm")
        A("buffer_load_dwordx4 v[160:163], v16, s[8:11], 0 offen sc1")
        A("buffer_load_dwordx4 v[164:167], v17, s[8:11], 0 offen offset:64 sc1")
    A("s_branch L_k_perm")
    A.label("L_k_ffn")
    A("v_mov_b32 v32, 0")
    A("s_cmp_gt_u32 s5, 27\ns_cbranch_scc1 L_k_hw")
    A(f"s_mul_i32 s7, s4, 28\ns_add_u32 s7, s7, s5\ns_lshl_b32 s7, s7, 8\ns_add_u32 s7, s7, {WS_PF}\ns_add_u32 s18, s8, s7\ns_addc_u32 s19, s9, 0")
    A.label("L_k_gf")
    for i in range(4):
        A(f"s_load_dwordx16 s[{GB+16*i}:{GB+16*i+15}], s[18:19], {64*i} glc")
    A("s_add_u32 s23, s23, 1")
    A(f"s_cmp_gt_u32 s23, {spin_max}\ns_cbranch_scc1 L_end")
    A("s_waitcnt lgkmcnt(0)")
    for i in range(64):
        A(f"v_writelane_b32 v13, s{GB+i}, {i}")
    A("v_and_b32 v14, 0xff, v13\nv_cmp_ne_u32 vcc, v14, v5")
    A("s_cbranch_vccnz L_k_gf")
    if mask: A("v_and_b32 v13, 0xffffff00, v13")
    A(f"v_add_f32_dpp v13, v13, v13 row_ror:8 {DPPM}")
    swapadd(16, 13, 14)
    A("v_mov_b32 v14, v13\nv_permlane32_swap_b32 v13, v14")
    A("v_cvt_pk_bf16_f32 v34, v13, v14\nv_lshlrev_b32 v32, 16, v34\nv_and_b32 v33, 0xffff0000, v34")
    A(f"v_mul_f32 v34, {f32(-LOG2E)}, v32\nv_exp_f32 v34, v34\nv_add_f32 v34, 1.0, v34\nv_rcp_f32 v34, v34\nv_mul_f32 v32, v32, v34")
    round_bf16(32, 34)
    A("v_mul_f32 v32, v32, v33")
    A(f"v_mov_b32_dpp v33, v32 quad_perm:[1,1,3,3] {DPPM}")
    A("v_cvt_pk_bf16_f32 v32, v32, v33")
    A.label("L_k_hw")
    A(f"v_lshlrev_b32 v33, 1, v0\nv_add_u32 v33, {L_AT + 96}, v33")
    A("s_mov_b64 exec, 0x55")
    A("ds_write_b32 v33, v32")
    A(f"s_mov_b64 exec, 1\nds_write_b32 {FA}, {ONE} offset:{F_H}\ns_mov_b64 exec, -1")
    stamp(6)
    A.label("L_k_perm")
    A(f"s_mov_b32 s58, 0x0c0c0400\ns_mov_b32 s59, 0x04000c0c\ns_mov_b32 s62, {f32(LOG2E/16)}\ns_mul_i32 s64, s6, 3\ns_mov_b64 s[66:67], -1")
    A("s_mov_b32 s68, 0xaaaaaaaa\ns_mov_b32 s69, 0xaaaaaaaa\ns_mov_b32 s48, 0\ns_mov_b32 s49, -1")
    if stamps: A("s_mov_b32 s72, 0\ns_mov_b32 s74, 0")
    FB2 = 64
    A(f"ds_read_b32 v23, {FA} offset:{F_FAST}")
    A("s_waitcnt vmcnt(0) lgkmcnt(0)")
    for p in range(4):
        ra = OW + 8 * p; rb = ra + 4
        for q in range(4):
            A(f"v_perm_b32 v{FB2 + 4*(2*q) + p}, v{rb+q}, v{ra+q}, s20")
            A(f"v_perm_b32 v{FB2 + 4*(2*q+1) + p}, v{rb+q}, v{ra+q}, s21")
    A(f"v_readfirstlane_b32 s1, v23\ns_cmp_eq_u32 s1, 4\ns_cselect_b32 s0, 0, {WS_H1B - WS_H1}")
    stamp(7)
    lds_wait("L_k_wst", "s_cmp_lt_u32 s7, 4", F_ST, "s23", "v28", FA)
    stamp(8)
    if h1p < 4: A(f"s_cmp_lt_u32 s3, {4 - h1p}\ns_cbranch_scc1 L_k_h1done")
    if stagger1:
        A("s_sub_u32 s7, 3, s3")
        A.label("L_k_stg")
        A("s_cmp_eq_u32 s7, 0\ns_cbranch_scc1 " + ("L_k_p1e" if h1sleep else "L_k_p1"))
        A(f"s_sleep {stagger1}\ns_sub_u32 s7, s7, 1\ns_branch L_k_stg")
    elif h1sleep:
        A("s_branch L_k_p1e")
    A.label("L_k_p1")
    if h1sleep:
        A(f"s_sleep {h1sleep}")
        A.label("L_k_p1e")
    P = 128
    A("s_mov_b64 exec, s[66:67]")
    A(f"buffer_load_dwordx4 v[{P}:{P+3}], v16, s[8:11], s0 offen sc1")
    A(f"buffer_load_dwordx4 v[{P+4}:{P+7}], v16, s[8:11], s0 offen offset:16 sc1")
    A(f"buffer_load_dwordx4 v[{P+8}:{P+11}], v17, s[8:11], s0 offen offset:64 sc1")
    A(f"ds_read_b32 v28, {FA} offset:{F_O}")
    A("s_add_u32 s23, s23, 1")
    A("s_waitcnt lgkmcnt(0)")
    A("v_readfirstlane_b32 s7, v28")
    A("s_cmp_lg_u32 s7, 0\ns_cbranch_scc1 L_k_h1done")
    A(f"s_cmp_gt_u32 s23, {spin_max}\ns_cbranch_scc1 L_end")
    A("s_waitcnt vmcnt(0)")
    T = P + 12
    for k in range(3):
        r = P + 4 * k
        A(f"v_perm_b32 v{T+2*k}, v{r+1}, v{r}, s58\nv_perm_b32 v{T+1+2*k}, v{r+3}, v{r+2}, s59")
    A(f"v_add3_u32 v{T}, v{T}, v{T+1}, v{T+2}\nv_add3_u32 v{T+3}, v{T+3}, v{T+4}, v{T+5}\nv_add_u32 v{T}, v{T}, v{T+3}")
    A(f"v_cmp_ne_u32 s[66:67], s64, v{T}")
    A("s_cmp_lg_u64 s[66:67], 0")
    A("s_cbranch_scc1 L_k_p1")
    A("s_mov_b64 exec, -1")
    stamp(9)
    M_, L_, X_, Y_ = T + 1, T + 2, T + 3, T + 4
    A(f"v_cndmask_b32 v{M_}, v{P+8}, v{P+10}, s[68:69]\nv_cndmask_b32 v{L_}, v{P+9}, v{P+11}, s[68:69]")
    A(f"v_and_b32 v{M_}, 0xffff0000, v{M_}")
    A(f"v_max_f32_dpp v{X_}, v{M_}, v{M_} quad_perm:[2,3,0,1] {DPPM}")
    A(f"v_max_f32_dpp v{X_}, v{X_}, v{X_} row_ror:4 {DPPM}")
    A(f"v_max_f32_dpp v{X_}, v{X_}, v{X_} row_ror:8 {DPPM}")
    swapadd(16, X_, Y_, "max")
    swapadd(32, X_, Y_, "max")
    A(f"v_sub_f32 v{M_}, v{M_}, v{X_}\nv_mul_f32 v{M_}, s62, v{M_}\nv_exp_f32 v{M_}, v{M_}")
    A(f"v_mul_f32 v{L_}, v{L_}, v{M_}")
    for i in range(8):
        A(f"v_mul_f32 v{P+i}, v{P+i}, v{M_}")
    A(f"v_add_f32_dpp v{L_}, v{L_}, v{L_} quad_perm:[2,3,0,1] {DPPM}")
    for i in range(4):
        A(f"v_permlane32_swap_b32 v{P+i}, v{P+4+i}")
    A(f"v_add_f32_dpp v{L_}, v{L_}, v{L_} row_ror:4 {DPPM}")
    A(f"v_pk_add_f32 {pr(P)}, {pr(P)}, {pr(P+4)}\nv_pk_add_f32 {pr(P+2)}, {pr(P+2)}, {pr(P+6)}")
    A(f"v_add_f32_dpp v{L_}, v{L_}, v{L_} row_ror:8 {DPPM}")
    A(f"v_permlane16_swap_b32 v{P}, v{P+2}\nv_permlane16_swap_b32 v{P+1}, v{P+3}")
    A(f"v_mov_b32 v{Y_}, v{L_}")
    A(f"v_pk_add_f32 {pr(P)}, {pr(P)}, {pr(P+2)}")
    A(f"v_permlane16_swap_b32 v{L_}, v{Y_}\nv_add_f32 v{L_}, v{L_}, v{Y_}")
    for mod in ("quad_perm:[2,3,0,1]", "row_ror:4", "row_ror:8"):
        A(f"v_add_f32_dpp v{P}, v{P}, v{P} {mod} {DPPM}")
        A(f"v_add_f32_dpp v{P+1}, v{P+1}, v{P+1} {mod} {DPPM}")
        if mod == "quad_perm:[2,3,0,1]":
            swapadd(32, L_, Y_)
            A(f"v_rcp_f32 v{L_}, v{L_}")
    A(f"v_mul_f32 v{P}, v{P}, v{L_}\nv_mul_f32 v{P+1}, v{P+1}, v{L_}\nv_cvt_pk_bf16_f32 v{P}, v{P}, v{P+1}")
    A("s_mov_b32 s66, 0x00030003\ns_mov_b32 s67, 0x00030003\ns_mov_b64 exec, s[66:67]")
    A(f"ds_write_b32 v10, v{P}")
    A("s_mov_b64 exec, 1")
    A(f"ds_write_b32 {FA}, {ONE} offset:{F_O}")
    A.label("L_k_h1done")
    A("s_mov_b64 exec, -1")
    A.label("L_k_w3")
    A(f"ds_read_b64 v[26:27], {FA} offset:{F_O}")
    A("ds_read_b128 v[28:31], v9") if not stamps else A("ds_read_b128 v[36:39], v9")
    AT = 36 if stamps else 28
    A("s_add_u32 s23, s23, 1")
    A("s_waitcnt lgkmcnt(0)")
    A("v_and_b32 v26, v26, v27")
    A("v_readfirstlane_b32 s7, v26")
    A(f"s_cmp_gt_u32 s23, {spin_max}\ns_cbranch_scc1 L_end")
    A("s_cmp_eq_u32 s7, 0\ns_cbranch_scc1 L_k_w3")
    stamp(10)
    for i in range(8):
        A(f"v_mfma_f32_16x16x32_bf16 v[{96+4*i}:{99+4*i}], v[{AT}:{AT+3}], v[{FB2+4*i}:{FB2+4*i+3}], 0")
    for k in range(4):
        A(f"v_cndmask_b32 v{32+k}, v{96+4*k}, v{112+4*k}, s[48:49]")
    for k in range(4):
        A(f"v_perm_b32 v{32+k}, v{32+k}, v12, s{12+k}")
    A("s_cmp_lg_u32 s1, 4\ns_cbranch_scc1 L_k_st1")
    A("buffer_store_dwordx4 v[32:35], v21, s[8:11], 0 offen sc1")
    A("buffer_store_dwordx4 v[32:35], v22, s[8:11], 0 offen")
    A("s_branch L_k_st2")
    A.label("L_k_st1")
    A("buffer_store_dwordx4 v[32:35], v8, s[8:11], 0 offen sc1")
    A.label("L_k_st2")
    lds_inc(FA, ONE, F_PUB)
    stamp(11)
    stamps_out(range(12), 31)
    A.label("L_end")
    A("s_endpgm")
    A.raw('.section .rodata,"a"\n.p2align 6')
    A.raw(f".amdhsa_kernel {KNAME}\n  .amdhsa_next_free_vgpr 192\n  .amdhsa_next_free_sgpr 102\n  .amdhsa_accum_offset 192\n  .amdhsa_group_segment_fixed_size 0\n  .amdhsa_kernarg_size 96\n  .amdhsa_user_sgpr_count 2\n  .amdhsa_user_sgpr_kernarg_segment_ptr 1\n  .amdhsa_system_sgpr_workgroup_id_x 1\n.end_amdhsa_kernel")
    return E.text()

if __name__ == "__main__":
    out = sys.argv[1] if len(sys.argv) > 1 else "recurrent_scan__sliding_block_cached__swiglu_ffn__decode.s"
    kw = {}
    for a in sys.argv[2:]:
        k, v = a.split("=", 1)
        kw[k] = eval(v)
    open(out, "w").write(gen(**kw))
```

```python
import sys
sys.path.insert(0, "dev")
from emit import Emitter
import struct

KNAME = "recurrent_scan__sliding_block_cached__swiglu_ffn__decode_kernel"
HEADER = open("recurrent_scan__sliding_block_cached__swiglu_ffn__decode.s.ref").read().split("; Override launch geometry")[0]

WS_PF    = 0x20000
WS_Q     = 0x80000
WS_QB    = 0x90000
WS_H1B   = 0x300000
WS_H1    = 0x100000
WS_H2    = 0x200000
WS_DBG   = 0x400000
WS_SIZE  = 0x1000000
OOB      = 0x7ffffff0
L_Q, L_S, L_AT, L_F, L_P = 0x000, 0x400, 0xC00, 0xC80, 0x1000
L_C2 = 0x1C00
F_SC, F_FAST, F_O, F_H, F_PUB, F_ST, F_VI, F_KI, F_Q, F_P, F_C2, F_QP = [4 * i for i in range(12)]
LOG2E = 1.4426950408889634
def f32(x): return "0x%08x" % struct.unpack("<I", struct.pack("<f", x))[0]
DPPM = "row_mask:0xf bank_mask:0xf"
def pr(i): return f"v[{i}:{i+1}]"

def gen(prew=False, qslow=1, gpos=16, kipos=16, gdelay=0, stamps=False, wflag=" nt", tflag=" nt", stagger1=2, stagger2=3, spin_max=1 << 18, kprio=1, vprio=3, kprio2=3, vprio2=2,
        kdelay=0, fdelay=4, wk=7, wv=8, kdrain=7, ilv=1, rsleep=4, qdelay=40, kisleep=1, visleep=1, warm1=True, force_slow=False,
        amp=None, tries=False, mask=True, h1p=4, h1sleep=0, smw=1, ffw=0, vwo=0, noq=0, h2s=8192, split2=1, p2w='pub', warm2=0, early=False, vwl=8, b0late=2, wot=560, h1v=1, rs1=80, warm1e=0, wbl=0, osc='', clean=0, own2=1, h1wt=0, qwt=0, pfl=' sc0', p2d=0, p2s=0, h1d=0, gt=0, hrot=0, crot=0, call=0, gux=0, wqx=4, qsx=16, gofs=0, vt=0, vt2=0, kt=0, ktn=11, w1f=' nt', xf='', gf=' sc1', h1f=' sc1', w2f=' sc1', wsoff=0, abl='', wod=0, wost=1, novi=0, gt2=0, fq=0, pp2=0, sw2=-1, swf=''):
    E = Emitter()
    A = E
    def spair(i):
        return 88 + 2 * i if i < 7 else 70 + 2 * (i - 7)
    def estamp(i):
        if stamps and early:
            p = spair(i)
            A(f"s_memrealtime s[{p}:{p+1}]")
    def stamp(i):
        if stamps and not (early and i >= 3):
            p = spair(i)
            A(f"s_memrealtime s[{p}:{p+1}]")
    def stamps_out(idx, vreg):
        if not stamps: return
        A("s_waitcnt lgkmcnt(0)")
        for i in idx:
            A(f"v_writelane_b32 v{vreg}, s{spair(i)}, {i}")
        A(f"s_lshl_b32 s7, s2, 10\ns_lshl_b32 s40, s3, 6\ns_add_u32 s7, s7, s40\ns_add_u32 s7, s7, {WS_DBG}")
        A(f"v_lshlrev_b32 v1, 2, v0\nv_add_u32 v1, s7, v1\nv_cmp_gt_u32 vcc, 16, v0\nv_mov_b32 v2, {OOB}\nv_cndmask_b32 v1, v2, v1, vcc")
        A(f"buffer_store_dword v{vreg}, v1, s[8:11], 0 offen")

    def allreduce16(regs, op="add"):
        for mod in ("quad_perm:[1,0,3,2]", "quad_perm:[2,3,0,1]", "row_ror:4", "row_ror:8"):
            for r in regs:
                A(f"v_{op}_f32_dpp v{r}, v{r}, v{r} {mod} {DPPM}")

    def wave_sum_to_sgpr(r, s):
        allreduce16([r])
        A(f"v_add_f32_dpp v{r}, v{r}, v{r} row_bcast:15 row_mask:0xa bank_mask:0xf")
        A(f"v_add_f32_dpp v{r}, v{r}, v{r} row_bcast:31 row_mask:0xc bank_mask:0xf")
        A(f"v_readlane_b32 s{s}, v{r}, 63")

    def round_bf16(r, t):
        A(f"v_cvt_pk_bf16_f32 v{t}, v{r}, v{r}")
        A(f"v_and_b32 v{r}, 0xffff0000, v{t}")

    def swapadd(kind, r, t, op="add"):
        A(f"v_mov_b32 v{t}, v{r}\nv_permlane{kind}_swap_b32 v{r}, v{t}\nv_{op}_f32 v{r}, v{r}, v{t}")

    def lds_wait(label, cmp, off, cnt, tmp, addr, sleep=0):
        if sleep:
            A(f"s_branch {label}_e")
            A.label(label)
            A(f"s_sleep {sleep}")
            A.label(label + "_e")
        else:
            A.label(label)
        A(f"ds_read_b32 {tmp}, {addr}" + (f" offset:{off}" if off else ""))
        A(f"s_add_u32 {cnt}, {cnt}, 1")
        A("s_waitcnt lgkmcnt(0)")
        A(f"v_readfirstlane_b32 s7, {tmp}")
        A(f"s_cmp_gt_u32 {cnt}, {spin_max}\ns_cbranch_scc1 L_end")
        A(f"{cmp}\ns_cbranch_scc1 {label}")

    def lds_inc(addr, one, off):
        A(f"s_mov_b64 exec, 1\nds_add_u32 {addr}, {one}" + (f" offset:{off}" if off else "") + "\ns_mov_b64 exec, -1")

    def twait(label, base, t, tmp, thr):
        A(f"s_add_u32 s{thr}, s{base}, {t}")
        A.label(label)
        A(f"s_memrealtime s[{tmp}:{tmp+1}]\ns_waitcnt lgkmcnt(0)\ns_sub_u32 s{tmp}, s{tmp}, s{thr}\ns_cmp_gt_u32 s{tmp}, 0x80000000\ns_cbranch_scc1 {label}")

    def epoch():
        A("s_mul_i32 s6, s6, 1664525\ns_add_u32 s6, s6, 1013904223\ns_or_b32 s6, s6, 1")
        A("v_mov_b32 v12, s6")

    def hop1(pf, FA, ONE, VA, VS, VW, S0, S1, SC, ST3, SEX, SAA, SOFF, SSP, TV, stg):
        ex = f"s[{SEX}:{SEX+1}]"; aa = f"s[{SAA}:{SAA+1}]"
        if h1p < 4: A(f"s_cmp_lt_u32 s3, {4 - h1p}\ns_cbranch_scc1 {pf}_h1done")
        if stagger1:
            A(stg)
            A.label(f"{pf}_stg")
            A(f"s_cmp_eq_u32 s7, 0\ns_cbranch_scc1 {pf}_p1")
            A(f"s_sleep {stagger1}\ns_sub_u32 s7, s7, 1\ns_branch {pf}_stg")
        A.label(f"{pf}_p1")
        P = 128
        A(f"s_mov_b64 exec, {ex}")
        def pl(so, fl):
            A(f"buffer_load_dwordx4 v[{P}:{P+3}], {VA}, s[8:11], {so} offen{fl}")
            A(f"buffer_load_dwordx4 v[{P+4}:{P+7}], {VA}, s[8:11], {so} offen offset:16{fl}")
            A(f"buffer_load_dwordx4 v[{P+8}:{P+11}], {VS}, s[8:11], {so} offen offset:64{fl}")
        if h1wt:
            A(f"s_cmp_lg_u32 {SOFF}, 0\ns_cbranch_scc1 {pf}_p1s")
            pl("0", pfl)
            A(f"s_branch {pf}_p1j")
            A.label(f"{pf}_p1s")
            pl("0", " sc1")
            A.label(f"{pf}_p1j")
        else:
            pl(SOFF, h1f)
        A(f"ds_read_b32 {TV}, {FA} offset:{F_O}")
        A(f"s_add_u32 {SSP}, {SSP}, 1")
        A("s_waitcnt lgkmcnt(0)")
        A(f"v_readfirstlane_b32 s7, {TV}")
        A(f"s_cmp_lg_u32 s7, 0\ns_cbranch_scc1 {pf}_h1done")
        A(f"s_cmp_gt_u32 {SSP}, {spin_max}\ns_cbranch_scc1 L_end")
        A("s_waitcnt vmcnt(0)")
        T = P + 12
        for k in range(3):
            r = P + 4 * k
            A(f"v_perm_b32 v{T+2*k}, v{r+1}, v{r}, {S0}\nv_perm_b32 v{T+1+2*k}, v{r+3}, v{r+2}, {S1}")
        A(f"v_add3_u32 v{T}, v{T}, v{T+1}, v{T+2}\nv_add3_u32 v{T+3}, v{T+3}, v{T+4}, v{T+5}\nv_add_u32 v{T}, v{T}, v{T+3}")
        A(f"v_cmp_ne_u32 {ex}, {ST3}, v{T}")
        A(f"s_cmp_lg_u64 {ex}, 0")
        A(f"s_cbranch_scc1 {pf}_p1")
        A("s_mov_b64 exec, -1")
        stamp(9 if pf == "L_k" else 2)
        M_, L_, X_, Y_ = T + 1, T + 2, T + 3, T + 4
        A(f"v_cndmask_b32 v{M_}, v{P+8}, v{P+10}, {aa}\nv_cndmask_b32 v{L_}, v{P+9}, v{P+11}, {aa}")
        A(f"v_and_b32 v{M_}, 0xffff0000, v{M_}")
        A(f"v_max_f32_dpp v{X_}, v{M_}, v{M_} quad_perm:[2,3,0,1] {DPPM}")
        A(f"v_max_f32_dpp v{X_}, v{X_}, v{X_} row_ror:4 {DPPM}")
        A(f"v_max_f32_dpp v{X_}, v{X_}, v{X_} row_ror:8 {DPPM}")
        swapadd(16, X_, Y_, "max")
        swapadd(32, X_, Y_, "max")
        A(f"v_sub_f32 v{M_}, v{M_}, v{X_}\nv_mul_f32 v{M_}, {SC}, v{M_}\nv_exp_f32 v{M_}, v{M_}")
        A(f"v_mul_f32 v{L_}, v{L_}, v{M_}")
        for i in range(8):
            A(f"v_mul_f32 v{P+i}, v{P+i}, v{M_}")
        A(f"v_add_f32_dpp v{L_}, v{L_}, v{L_} quad_perm:[2,3,0,1] {DPPM}")
        for i in range(4):
            A(f"v_permlane32_swap_b32 v{P+i}, v{P+4+i}")
        A(f"v_add_f32_dpp v{L_}, v{L_}, v{L_} row_ror:4 {DPPM}")
        A(f"v_pk_add_f32 {pr(P)}, {pr(P)}, {pr(P+4)}\nv_pk_add_f32 {pr(P+2)}, {pr(P+2)}, {pr(P+6)}")
        A(f"v_add_f32_dpp v{L_}, v{L_}, v{L_} row_ror:8 {DPPM}")
        A(f"v_permlane16_swap_b32 v{P}, v{P+2}\nv_permlane16_swap_b32 v{P+1}, v{P+3}")
        A(f"v_mov_b32 v{Y_}, v{L_}")
        A(f"v_pk_add_f32 {pr(P)}, {pr(P)}, {pr(P+2)}")
        A(f"v_permlane16_swap_b32 v{L_}, v{Y_}\nv_add_f32 v{L_}, v{L_}, v{Y_}")
        for mod in ("quad_perm:[2,3,0,1]", "row_ror:4", "row_ror:8"):
            A(f"v_add_f32_dpp v{P}, v{P}, v{P} {mod} {DPPM}")
            A(f"v_add_f32_dpp v{P+1}, v{P+1}, v{P+1} {mod} {DPPM}")
            if mod == "quad_perm:[2,3,0,1]":
                swapadd(32, L_, Y_)
                A(f"v_rcp_f32 v{L_}, v{L_}")
        A(f"v_mul_f32 v{P}, v{P}, v{L_}\nv_mul_f32 v{P+1}, v{P+1}, v{L_}\nv_cvt_pk_bf16_f32 v{P}, v{P}, v{P+1}")
        A(f"s_mov_b32 s{SEX}, 0x00030003\ns_mov_b32 s{SEX+1}, 0x00030003\ns_mov_b64 exec, {ex}")
        A(f"ds_write_b32 {VW}, v{P}")
        A("s_mov_b64 exec, 1")
        A(f"ds_write_b32 {FA}, {ONE} offset:{F_O}")
        A.label(f"{pf}_h1done")
        A("s_mov_b64 exec, -1")

    NPW = 5 if prew else 0
    BS, CS = (17, 12) if ilv else (12, 16)
    NREC = (15 << BS) + 4096

    A.raw(HEADER.rstrip())
    A.raw("; @launch grid=(256,1,1) block=(512,1,1) lds=8192")
    A.raw('.amdgcn_target "amdgcn-amd-amdhsa--gfx950"')
    A.raw(".text")
    A.raw(f".globl {KNAME}\n.p2align 8\n.type {KNAME},@function\n{KNAME}:")
    A("s_cmp_ge_u32 s2, 256")
    A("s_cbranch_scc1 L_end")
    A("s_load_dwordx16 s[16:31], s[0:1], 0")
    A("s_load_dwordx8 s[32:39], s[0:1], 64")
    stamp(0)
    A("v_lshrrev_b32 v1, 6, v0")
    A("v_and_b32 v0, 63, v0")
    A("v_readfirstlane_b32 s3, v1")
    if hrot: A(f"s_add_u32 s4, s2, {hrot}\ns_and_b32 s4, s4, 7")
    else: A("s_and_b32 s4, s2, 7")
    A("s_lshr_b32 s5, s2, 3")
    if call: A(f"s_add_u32 s5, s5, {call}\ns_and_b32 s5, s5, 31")
    A("v_and_b32 v2, 15, v0")
    A("v_lshrrev_b32 v3, 4, v0")
    A("s_cmp_lt_u32 s3, 4")
    A("s_cbranch_scc1 L_k")

    WB = 64
    XP = 16
    A(f"s_setprio {vprio}")
    if vt or vt2 or sw2 > 0: A("s_memrealtime s[86:87]")
    A("s_sub_u32 s3, s3, 4")
    A("s_mov_b32 s42, 896\ns_mov_b32 s43, 0x20000")
    A("s_mov_b32 s63, 0\ns_cmp_gt_u32 s3, 1\ns_cbranch_scc1 L_v_b0")
    A("s_cmp_eq_u32 s3, 1\ns_cbranch_scc1 L_pro_q")
    A("s_cmp_gt_u32 s5, 27\ns_cbranch_scc1 L_v_b0")
    A(f"s_mul_i32 s59, s4, 28\ns_add_u32 s59, s59, s5\ns_xor_b32 s63, s59, {gux}\ns_lshr_b32 s63, s63, 3\ns_movk_i32 s48, 3584\ns_mov_b32 s46, 1605632\ns_and_b32 s62, s59, 3")
    A("s_branch L_pro_c")
    A.label("L_pro_q")
    A(f"s_and_b32 s62, s5, 3\ns_lshl_b32 s63, s4, 3\ns_lshr_b32 s45, s5, 2\ns_xor_b32 s45, s45, {wqx}\ns_add_u32 s63, s63, s45\ns_movk_i32 s48, 0x2000\ns_mov_b32 s46, 3670016")
    A("s_mov_b32 s59, 0x80000000")
    A.label("L_pro_c")
    A("s_mul_i32 s7, s62, 112\ns_mul_i32 s44, s7, s48\ns_lshl_b32 s45, s63, 7\ns_add_u32 s44, s44, s45\ns_sub_u32 s46, s46, s44")
    A("s_lshl_b32 s7, s7, 1\ns_mul_i32 s45, s48, 14")
    A("v_and_b32 v14, 7, v0\nv_lshrrev_b32 v15, 3, v0")
    A("v_mul_u32_u24 v5, s45, v15\nv_lshl_add_u32 v5, v14, 4, v5")
    A("v_mul_u32_u24 v4, 28, v15\nv_add_u32 v4, s7, v4\nv_lshlrev_b32 v1, 4, v0")
    A("s_mov_b32 s62, s59")
    for k in range(2, 14):
        A(f"s_add_u32 s{47+k}, s{46+k}, s48")
    A("s_mov_b32 s47, 0x20000\ns_mov_b32 s63, 1")
    A("s_bitcmp1_b32 s62, 2")
    A("s_waitcnt lgkmcnt(0)")
    estamp(3)
    A("s_cselect_b64 s[28:29], s[30:31], s[28:29]")
    A("s_cmp_lt_i32 s62, 0")
    A("s_cselect_b64 s[28:29], s[22:23], s[28:29]")
    A("s_mov_b32 s40, s16\ns_mov_b32 s41, s17")
    A("s_add_u32 s44, s28, s44\ns_addc_u32 s45, s29, 0")
    A(f"buffer_load_dwordx4 v[24:27], v1, s[40:43], 0 offen{xf}")
    A(f"buffer_load_dwordx4 v[{XP}:{XP+3}], v4, s[40:43], 0 offen{xf}")
    A(f"buffer_load_dwordx3 v[{XP+4}:{XP+6}], v4, s[40:43], 0 offen offset:16{xf}")
    A("s_cmp_lt_i32 s62, 0\ns_cbranch_scc1 L_v_tl")
    if wsoff: A(f"s_add_u32 s38, s38, {wsoff}\ns_addc_u32 s39, s39, 0")
    A("s_load_dword s6, s[38:39], 0")
    A("s_barrier")
    if fq:
        A(f"v_mov_b32 v7, {L_F}\ns_mov_b32 s69, 0")
        lds_wait("L_v_fq", "s_cmp_lt_u32 s7, 1", F_QP, "s69", "v13", "v7", sleep=2)
    elif fdelay: A(f"s_sleep {fdelay}")
    A.label("L_v_tl")
    for k in range(14):
        r = WB + 4 * k
        A(f"buffer_load_dwordx4 v[{r}:{r+3}], v5, s[44:47], {('s%d' % (47+k)) if k else '0'} offen{tflag}")
    estamp(4)
    if prew:
        A(f"s_mov_b32 s8, s38\ns_mov_b32 s9, s39\ns_mov_b32 s10, {WS_SIZE}\ns_mov_b32 s11, 0x20000")
        A(f"s_lshl_b32 s7, s4, 5\ns_add_u32 s7, s7, s5\ns_lshl_b32 s0, s7, 8\ns_add_u32 s0, s0, {WS_Q}\ns_lshl_b32 s7, s7, 12\ns_add_u32 s7, s7, {WS_H1}")
        A(f"s_cmp_lt_i32 s62, 0\ns_cselect_b32 s0, s0, {WS_SIZE}\ns_cselect_b32 s7, s7, {WS_SIZE}")
        A("v_mov_b32 v28, 0\nv_mov_b32 v29, 0\nv_mov_b32 v30, 0\nv_mov_b32 v31, 0\nv_lshlrev_b32 v6, 2, v0")
        A("buffer_store_dword v28, v6, s[8:11], s0 offen")
        for i in range(4 if prew else 0):
            A(f"buffer_store_dwordx4 v[28:31], v1, s[8:11], s7 offen offset:{1024*i}")
    A("s_cmp_ge_i32 s62, 0\ns_cbranch_scc1 L_v")
    A.label("L_v_b0")
    A("s_waitcnt lgkmcnt(0)")
    if wsoff: A(f"s_add_u32 s38, s38, {wsoff}\ns_addc_u32 s39, s39, 0")
    A("s_load_dword s6, s[38:39], 0")
    A("s_barrier")
    A.label("L_v")
    VB = 128
    FA, ONE = "v7", "v8"
    A(f"s_mov_b32 s8, s38\ns_mov_b32 s9, s39\ns_mov_b32 s10, {WS_SIZE}\ns_mov_b32 s11, 0x20000")
    A("s_mov_b32 s40, s16\ns_mov_b32 s41, s17")
    A(f"s_lshl_b32 s0, s4, 25\ns_add_u32 s0, s0, 0x1e00000\ns_add_u32 s7, s5, {crot}\ns_and_b32 s7, s7, 31\ns_lshl_b32 s7, s7, {CS}\ns_add_u32 s0, s0, s7")
    A(f"s_add_u32 s64, s20, s0\ns_addc_u32 s65, s21, 0\ns_mov_b32 s66, {NREC}\ns_mov_b32 s67, 0x20000\ns_mov_b32 s68, {8<<BS}\ns_mov_b32 s69, 0")
    A("s_mov_b32 s32, s34\ns_mov_b32 s33, s35\ns_mov_b32 s34, 896\ns_mov_b32 s35, 0x20000")
    A("s_getreg_b32 s17, hwreg(HW_REG_XCC_ID, 0, 3)")
    if stamps: A("v_mov_b32 v125, 0\ns_mov_b32 s90, 0\ns_mov_b32 s92, 0\ns_mov_b32 s98, 0\ns_mov_b32 s72, 0\ns_mov_b32 s74, 0\ns_mov_b32 s76, 0")
    A("s_mov_b32 s16, 0x05040100\ns_mov_b32 s18, 0x07060302")
    A("s_mov_b32 s19, 0x0c0c0400\ns_mov_b32 s39, 0x04000c0c")
    A("s_mov_b32 s12, 0x07060500\ns_mov_b32 s13, 0x07060501\ns_mov_b32 s14, 0x07060502\ns_mov_b32 s15, 0x07060503")
    A(f"v_mov_b32 {FA}, {L_F}\nv_mov_b32 {ONE}, 1\nv_mov_b32 v11, {OOB}")
    A("s_cmp_eq_u32 s63, 0\ns_cbranch_scc1 L_v_nt")
    A(f"s_and_b32 s45, s62, 0xf8\ns_lshl_b32 s45, s45, 8\ns_and_b32 s46, s62, 7\ns_lshl_b32 s46, s46, 5\ns_add_u32 s45, s45, s46\ns_add_u32 s45, s45, {WS_PF}")
    A(f"s_lshl_b32 s44, s4, 13\ns_xor_b32 s46, s5, {qsx}\ns_lshl_b32 s46, s46, 8\ns_add_u32 s44, s44, s46\ns_add_u32 s44, s44, {WS_Q}")
    A(f"s_cmp_lt_i32 s62, 0\ns_cselect_b32 s44, s44, s45\ns_cselect_b32 s45, 5, 8\ns_cselect_b32 s0, 0, {WS_SIZE}\ns_cselect_b32 s1, {WS_QB - WS_Q}, 0")
    A("v_lshrrev_b32 v13, 5, v0\nv_lshlrev_b32 v13, 4, v13\nv_lshlrev_b32 v10, s45, v14\nv_add3_u32 v10, v10, v13, s44")
    A("v_and_b32 v13, 0x18, v0\nv_cmp_eq_u32 vcc, 0, v13\nv_cndmask_b32 v10, v11, v10, vcc")
    A(f"s_waitcnt vmcnt({16+NPW})")
    estamp(5)
    for p in range(4):
        A(f"v_lshlrev_b32 v{32+2*p}, 16, v{24+p}\nv_and_b32 v{33+2*p}, 0xffff0000, v{24+p}")
    A(f"v_pk_add_f32 {pr(46)}, {pr(32)}, {pr(34)}\nv_pk_add_f32 {pr(48)}, {pr(36)}, {pr(38)}\nv_pk_add_f32 {pr(46)}, {pr(46)}, {pr(48)}\nv_add_f32 v46, v46, v47")
    wave_sum_to_sgpr(46, 48)
    A(f"v_mov_b32 v30, {f32(1.0/448)}\nv_mul_f32 v46, s48, v30")
    A("v_cmp_gt_u32 vcc, 56, v0")
    for p in range(4):
        A(f"v_pk_add_f32 {pr(32+2*p)}, {pr(32+2*p)}, {pr(46)} op_sel_hi:[1,0] neg_lo:[0,1] neg_hi:[0,1]")
    A(f"v_pk_mul_f32 {pr(24)}, {pr(32)}, {pr(32)}")
    for p in range(1, 4):
        A(f"v_pk_fma_f32 {pr(24)}, {pr(32+2*p)}, {pr(32+2*p)}, {pr(24)}")
    A("v_add_f32 v24, v24, v25\nv_cndmask_b32 v24, 0, v24, vcc")
    wave_sum_to_sgpr(24, 48)
    A("v_mul_f32 v24, s48, v30")
    A("v_cvt_pk_bf16_f32 v25, v46, v24\nv_lshlrev_b32 v46, 16, v25\nv_and_b32 v24, 0xffff0000, v25")
    A(f"v_add_f32 v24, {f32(1e-5)}, v24")
    round_bf16(24, 25)
    A("v_sqrt_f32 v24, v24")
    round_bf16(24, 25)
    A("v_rcp_f32 v28, v24")
    A(f"s_waitcnt vmcnt({14+NPW})")
    for p in range(7):
        A(f"v_lshlrev_b32 v{32+2*p}, 16, v{XP+p}\nv_and_b32 v{33+2*p}, 0xffff0000, v{XP+p}")
    for p in range(7):
        A(f"v_pk_add_f32 {pr(32+2*p)}, {pr(32+2*p)}, {pr(46)} op_sel_hi:[1,0] neg_lo:[0,1] neg_hi:[0,1]")
    for p in range(7):
        A(f"v_cvt_pk_bf16_f32 v{XP+p}, v{32+2*p}, v{33+2*p}")
    for p in range(7):
        A(f"v_lshlrev_b32 v{32+2*p}, 16, v{XP+p}\nv_and_b32 v{33+2*p}, 0xffff0000, v{XP+p}")
    for p in range(7):
        A(f"v_pk_mul_f32 {pr(46+2*p)}, {pr(32+2*p)}, {pr(28)} op_sel_hi:[1,0]")
    for p in range(7):
        A(f"v_pk_fma_f32 {pr(32+2*p)}, {pr(46+2*p)}, {pr(24)}, {pr(32+2*p)} op_sel_hi:[1,0,1] neg_lo:[1,0,0] neg_hi:[1,0,0]")
    for p in range(7):
        A(f"v_pk_fma_f32 {pr(46+2*p)}, {pr(32+2*p)}, {pr(28)}, {pr(46+2*p)} op_sel_hi:[1,0,1]")
    for p in range(7):
        A(f"v_cvt_pk_bf16_f32 v{XP+p}, v{46+2*p}, v{47+2*p}")
    A("s_waitcnt lgkmcnt(0)")
    epoch()
    A("s_lshl_b32 s17, s17, 29\ns_and_b32 s7, s6, 0x1fffffff\ns_or_b32 s17, s17, s7")
    A("s_cmp_lt_i32 s62, 0\ns_cselect_b32 s7, s17, s6\nv_mov_b32 v124, s7")
    for i in range(8):
        A(f"v_mov_b32 v{32+i}, 0")
    for u in range(7):
        A(f"s_waitcnt vmcnt({14 - (2*u + 2) + NPW})")
        if u == 0: estamp(6)
        if u == 6: estamp(7)
        ra = WB + 8 * u; rb = ra + 4
        for q in range(4):
            A(f"v_perm_b32 v{40+2*q}, v{rb+q}, v{ra+q}, s16\nv_perm_b32 v{41+2*q}, v{rb+q}, v{ra+q}, s18")
        for q in range(8):
            A(f"v_dot2c_f32_bf16 v{32+q}, v{40+q}, v{XP+u}")
    for i in range(4):
        A(f"v_permlane32_swap_b32 v{32+i}, v{36+i}")
    A(f"v_pk_add_f32 {pr(32)}, {pr(32)}, {pr(36)}\nv_pk_add_f32 {pr(34)}, {pr(34)}, {pr(38)}")
    for i in range(4):
        A(f"v_add_f32_dpp v{32+i}, v{32+i}, v{32+i} row_ror:8 {DPPM}")
    for i in range(4):
        A(f"v_mov_b32 v{36+i}, v{32+i}")
    for i in range(4):
        A(f"v_permlane16_swap_b32 v{32+i}, v{36+i}")
    A(f"v_pk_add_f32 {pr(32)}, {pr(32)}, {pr(36)}\nv_pk_add_f32 {pr(34)}, {pr(34)}, {pr(38)}")
    for i in range(4):
        A(f"v_perm_b32 v{32+i}, v{32+i}, v124, s{12+i}")
    if prew: A("s_waitcnt vmcnt(0)")
    if qwt:
        A("buffer_store_dwordx4 v[32:35], v10, s[8:11], 0 offen sc1")
    else:
        A("buffer_store_dwordx4 v[32:35], v10, s[8:11], s0 offen")
        if 's' not in abl: A("buffer_store_dwordx4 v[32:35], v10, s[8:11], s1 offen sc1")
    if fq: lds_inc(FA, ONE, F_QP)
    stamp(1)
    A("s_branch L_v_t")
    A.label("L_v_nt")
    A("s_waitcnt lgkmcnt(0)")
    epoch()
    A.label("L_v_t")
    A(f"v_lshrrev_b32 v5, 3, v2\nv_and_b32 v14, 7, v2\nv_lshlrev_b32 v6, 4, v14\nv_lshl_add_u32 v6, v5, {BS+2}, v6\nv_lshl_add_u32 v6, v3, {BS}, v6")
    A("s_lshl_b32 s7, s3, 7\nv_add_u32 v6, s7, v6")
    A("s_lshl_b32 s7, s2, 3\nv_lshlrev_b32 v9, 1, v3\nv_add_u32 v9, s7, v9")
    A("buffer_load_ushort v126, v9, s[40:43], 0 offen")
    A(f"s_lshl_b32 s7, s4, 5\ns_lshl_b32 s0, s3, 3\ns_add_u32 s7, s7, s0\ns_lshl_b32 s7, s7, 12\ns_mul_i32 s0, s5, {rs1}\ns_add_u32 s7, s7, s0\ns_add_u32 s7, s7, {WS_H1}")
    A("s_mov_b32 s80, 0\ns_mov_b32 s81, -1\ns_mov_b32 s82, 0xff00ff00\ns_mov_b32 s83, 0xff00ff00\ns_mov_b32 s84, 0xff000000\ns_mov_b32 s85, 0xff00ff00")
    A("v_lshrrev_b32 v16, 1, v3\nv_and_b32 v17, 1, v3\nv_lshlrev_b32 v121, 5, v17\nv_lshl_add_u32 v121, v16, 4, v121\nv_mov_b32 v17, 64\nv_cndmask_b32 v121, v121, v17, s[82:83]")
    A("v_lshl_add_u32 v121, v14, 12, v121\nv_add_u32 v121, s7, v121\nv_cndmask_b32 v121, v121, v11, s[84:85]")
    A("v_cmp_eq_u32 vcc, 0, v2\nv_cndmask_b32 v9, v11, v9, vcc")
    A(f"s_mul_i32 s7, s2, {h2s}\ns_add_u32 s7, s7, {WS_H2}\nv_lshlrev_b32 v122, 4, v0\nv_add_u32 v122, s7, v122")
    NP2 = 2 if split2 else 8
    if split2:
        A("s_lshl_b32 s0, s3, 1\ns_add_u32 s0, s0, s4")
    for k in range(NP2):
        A(f"s_add_u32 s7, {'s0' if split2 else 's4'}, {k}\ns_and_b32 s7, s7, 7\ns_lshl_b32 s{20+k}, s7, 10")
    A(f"s_lshl_b32 s87, s6, {1 if split2 else 3}\nv_lshlrev_b32 v120, 4, v0\nv_add_u32 v120, {L_P}, v120")
    if split2:
        A(f"v_and_b32 v18, 1, v0\nv_lshl_add_u32 v18, v3, 1, v18\nv_lshlrev_b32 v18, 4, v18\nv_add_u32 v18, {L_C2}, v18")
        A("s_lshl_b32 s7, s3, 2\nv_add_u32 v19, s7, v18\ns_mov_b32 s22, 0x00030003\ns_mov_b32 s23, 0x00030003")
    if h1v:
        A(f"s_lshl_b32 s7, s4, 5\ns_add_u32 s7, s7, s5\ns_lshl_b32 s7, s7, 12\ns_add_u32 s7, s7, {WS_H1}\nv_and_b32 v14, 1, v0")
        A(f"v_lshrrev_b32 v21, 1, v0\nv_mul_u32_u24 v21, {rs1}, v21\nv_add_u32 v21, s7, v21\nv_lshl_add_u32 v20, v14, 5, v21")
        A(f"v_lshlrev_b32 v22, 4, v14\nv_lshl_add_u32 v22, v3, 2, v22\nv_add_u32 v22, {L_AT}, v22")
        A(f"s_mul_i32 s24, s6, 3\ns_mov_b64 s[26:27], -1\ns_mov_b32 s28, 0xaaaaaaaa\ns_mov_b32 s29, 0xaaaaaaaa\ns_mov_b32 s30, {f32(LOG2E/16)}")
    def warm2_loads():
        A("s_cmp_lt_u32 s3, 2\ns_cbranch_scc1 L_v_nw2")
        A(f"s_mul_i32 s7, s2, 3584\ns_lshl_b32 s0, s3, 11\ns_add_u32 s7, s7, s0\ns_add_u32 s7, s7, {WS_H2 - 4096}\nv_lshlrev_b32 v23, 4, v0")
        A(f"buffer_load_dwordx4 v[28:31], v23, s[8:11], s7 offen{w2f}\nbuffer_load_dwordx4 v[24:27], v23, s[8:11], s7 offen offset:1024{w2f}")
        A.label("L_v_nw2")
    if warm2 == 1: warm2_loads()
    lds_wait("L_v_wki", "s_cmp_lt_u32 s7, 4", F_KI, "s69", "v13", FA, sleep=kisleep)
    if warm2 == 2: warm2_loads()
    if not h1v: stamp(2)
    if (vt or vt2) and gofs: A(f"s_cmp_lt_u32 s4, 2\ns_cselect_b32 s7, {gofs}, 0\ns_add_u32 s86, s86, s7")
    if vt: twait("L_v_vt", 86, vt, 62, 61)
    n = 0
    for sg in range(2):
        for e in range(8):
            r = VB + 32 * sg + 4 * e
            if wv and n >= wv: A(f"s_waitcnt vmcnt({wv-1})")
            if vt2 and n == 8: twait("L_v_vt2", 86, vt2, 62, 61)
            A(f"buffer_load_dwordx4 v[{r}:{r+3}], v6, s[64:67], {'0' if sg == 0 else 's68'} offen offset:{512*e} nt")
            n += 1
            if n == 16 - vwo and vwl >= 8: lds_inc(FA, ONE, F_VI)
    A(f"s_setprio {vprio2}")
    stamp(3)
    FB, OB, PA = 64, 32, 100
    def vperm(sg, p):
        A(f"s_waitcnt vmcnt({16 - (8*sg + 2*p + 2)})")
        if 16 - (8*sg + 2*p + 2) == vwl and vwl < 8: lds_inc(FA, ONE, F_VI)
        ra = VB + 32 * sg + 8 * p; rb = ra + 4
        for q in range(4):
            A(f"v_perm_b32 v{FB + 4*(2*q) + p}, v{rb+q}, v{ra+q}, s16")
            A(f"v_perm_b32 v{FB + 4*(2*q+1) + p}, v{rb+q}, v{ra+q}, s18")
    for p in range(4): vperm(0, p)
    A.label("L_v_wp")
    A(f"ds_read_b32 v13, {FA} offset:{F_P}\nds_read_b32 v14, {FA} offset:{F_FAST}")
    for i in range(3):
        A(f"ds_read_b128 v[{PA+4*i}:{PA+4*i+3}], v120 offset:{1024*i}")
    A("s_add_u32 s69, s69, 1\ns_waitcnt lgkmcnt(0)\nv_readfirstlane_b32 s7, v13")
    A(f"s_cmp_gt_u32 s69, {spin_max}\ns_cbranch_scc1 L_end")
    A("s_cmp_eq_u32 s7, 0\ns_cbranch_scc1 L_v_wp")
    stamp(4)
    A("v_readfirstlane_b32 s61, v14")
    for sg in range(2):
        if sg:
            for p in range(4): vperm(1, p)
        for i in range(8):
            c = "0" if sg == 0 else f"v[{OB+4*i}:{OB+4*i+3}]"
            A(f"v_mfma_f32_16x16x32_bf16 v[{OB+4*i}:{OB+4*i+3}], v[{PA+4*sg}:{PA+4*sg+3}], v[{FB+4*i}:{FB+4*i+3}], {c}")
    stamp(6)
    for i in range(8):
        A(f"v_add_f32_dpp v{112+i}, v{OB+4*i+1}, v{OB+4*i} row_shl:8 {DPPM} bound_ctrl:0")
    for i in range(4):
        A(f"v_cndmask_b32 v{112+i}, v{112+i}, v{116+i}, s[80:81]")
    for i in range(4):
        A(f"v_cndmask_b32 v{112+i}, v{112+i}, v{108+i}, s[82:83]")
    for i in range(4):
        A(f"v_perm_b32 v{112+i}, v{112+i}, v12, s{12 + i}")
    if h1wt:
        A("buffer_store_dwordx4 v[112:115], v121, s[8:11], 0 offen sc1")
    else:
        A("s_cmp_lg_u32 s61, 4\ns_cbranch_scc1 L_v_st1")
        A("buffer_store_dwordx4 v[112:115], v121, s[8:11], 0 offen")
        A("s_branch L_v_st2")
        A.label("L_v_st1")
        A(f"s_mov_b32 s7, {WS_H1B - WS_H1}\nbuffer_store_dwordx4 v[112:115], v121, s[8:11], s7 offen sc1")
        A.label("L_v_st2")
    lds_inc(FA, ONE, F_ST)
    stamp(7)
    if h1v:
        A(f"s_cmp_eq_u32 s61, 4\ns_cselect_b32 s31, 0, {WS_H1B - WS_H1}")
        if sw2 >= 0:
            A("s_cmp_gt_u32 s3, 1\ns_cbranch_scc1 L_v_nsw\ns_cmp_ge_u32 s2, 112\ns_cbranch_scc1 L_v_fin")
            if sw2 > 0: twait("L_v_swt", 86, sw2, 62, 60)
            A(f"s_mul_i32 s7, s2, {h2s}\ns_lshl_b32 s62, s3, 12\ns_add_u32 s7, s7, s62\ns_add_u32 s7, s7, {WS_H2}\ns_add_u32 s62, s8, s7\ns_addc_u32 s63, s9, 0")
            for i in range(32):
                A(f"s_load_dword s60, s[62:63], {128*i}{swf}")
            A("s_branch L_v_h1done")
            A.label("L_v_nsw")
        lds_wait("L_v_wst", "s_cmp_lt_u32 s7, 4", F_ST, "s69", "v13", FA)
        if h1d: A(f"s_sleep {h1d}")
        hop1("L_v", FA, ONE, "v20", "v21", "v22", "s19", "s39", "s30", "s24", 26, 28, "s31", "s69", "v13", "s_mov_b32 s7, s3")
    A("s_cmp_ge_u32 s2, 112\ns_cbranch_scc1 L_v_fin")
    A("s_mov_b64 s[0:1], -1")
    if p2w == 'pub': lds_wait("L_v_w2", "s_cmp_lt_u32 s7, 4", F_PUB, "s69", "v13", FA)
    elif p2w == 'o': lds_wait("L_v_w2", "s_cmp_lt_u32 s7, 1", F_O, "s69", "v13", FA)
    stamp(8)
    if stagger2 and not split2:
        A("s_mov_b32 s7, s3")
        A.label("L_v_stg2")
        A("s_cmp_eq_u32 s7, 0\ns_cbranch_scc1 L_v_p2")
        A(f"s_sleep {stagger2}\ns_sub_u32 s7, s7, 1\ns_branch L_v_stg2")
    if pp2:
        def p2l():
            for k in range(2):
                A(f"buffer_load_dwordx4 v[{72+4*k}:{75+4*k}], v122, s[8:11], s{20+k} offen sc1")
        p2l()
        A(f"s_sleep {pp2}")
        A.label("L_v_p2")
        stamp(5)
        p2l()
        A("s_add_u32 s69, s69, 1")
        A(f"s_cmp_gt_u32 s69, {spin_max}\ns_cbranch_scc1 L_end")
        A("s_waitcnt vmcnt(2)")
        for k in range(2):
            r = 72 + 4 * k
            A(f"v_perm_b32 v{96+2*k}, v{r+1}, v{r}, s19\nv_perm_b32 v{97+2*k}, v{r+3}, v{r+2}, s39")
        A("v_add_u32 v112, v96, v97\nv_add3_u32 v112, v112, v98, v99")
        A("v_cmp_ne_u32 vcc, s87, v112")
        A("s_mov_b64 exec, vcc")
        A("s_cbranch_execnz L_v_p2")
        A("s_mov_b64 exec, -1")
        stamp(9)
        A(f"v_pk_add_f32 {pr(64)}, {pr(72)}, {pr(76)}\nv_pk_add_f32 {pr(66)}, {pr(74)}, {pr(78)}")
    else:
        if p2d: A(f"s_sleep {p2d}")
        if p2s:
            A("s_branch L_v_p2e")
        A.label("L_v_p2")
        if p2s:
            A(f"s_sleep {p2s}")
            A.label("L_v_p2e")
        stamp(5)
        A("s_mov_b64 exec, s[0:1]")
        for k in range(NP2):
            A(f"buffer_load_dwordx4 v[{64+4*k}:{67+4*k}], v122, s[8:11], s{20+k} offen sc1")
        A("s_add_u32 s69, s69, 1")
        A(f"s_cmp_gt_u32 s69, {spin_max}\ns_cbranch_scc1 L_end")
        for k in range(NP2):
            r = 64 + 4 * k
            A(f"s_waitcnt vmcnt({NP2-1-k})")
            A(f"v_perm_b32 v{96+2*k}, v{r+1}, v{r}, s19\nv_perm_b32 v{97+2*k}, v{r+3}, v{r+2}, s39")
            if k == 0:
                A("v_add_u32 v112, v96, v97")
            else:
                A(f"v_add3_u32 v112, v112, v{96+2*k}, v{97+2*k}")
        A("v_cmp_ne_u32 s[0:1], s87, v112")
        A("s_cmp_lg_u64 s[0:1], 0")
        A("s_cbranch_scc1 L_v_p2")
        A("s_mov_b64 exec, -1")
        stamp(9)
        for st_ in ((4,) if split2 else (16, 8, 4)):
            for base in range(64, 64 + st_, 2):
                A(f"v_pk_add_f32 {pr(base)}, {pr(base)}, {pr(base+st_)}")
    A("v_permlane32_swap_b32 v64, v66\nv_permlane32_swap_b32 v65, v67")
    A(f"v_pk_add_f32 {pr(64)}, {pr(64)}, {pr(66)}")
    A("v_permlane16_swap_b32 v64, v65")
    A("v_add_f32 v64, v64, v65")
    for mod in ("quad_perm:[2,3,0,1]", "row_ror:4", "row_ror:8"):
        A(f"v_add_f32_dpp v64, v64, v64 {mod} {DPPM}")
    if split2:
        A("s_mov_b64 exec, s[22:23]\nds_write_b32 v19, v64")
        A(f"s_mov_b64 exec, 1\nds_add_rtn_u32 v13, {FA}, {ONE} offset:{F_C2}\ns_mov_b64 exec, -1")
        A("ds_read_b128 v[68:71], v18\ns_waitcnt lgkmcnt(0)\nv_readfirstlane_b32 s7, v13")
        A(f"v_pk_add_f32 {pr(68)}, {pr(68)}, {pr(70)}\nv_add_f32 v64, v68, v69")
        A("s_cmp_lg_u32 s7, 3\ns_cbranch_scc1 L_v_fin")
    A(f"v_mov_b32_dpp v68, v64 quad_perm:[1,0,3,2] {DPPM}")
    A("v_cvt_pk_bf16_f32 v65, v64, v68")
    A("v_and_b32 v68, 0xffff0000, v65\nv_lshlrev_b32 v64, 16, v65")
    A(f"v_mul_f32 v66, {f32(-LOG2E)}, v68\nv_exp_f32 v66, v66\nv_add_f32 v66, 1.0, v66\nv_rcp_f32 v66, v66\nv_mul_f32 v66, v68, v66")
    round_bf16(66, 67)
    A("v_mul_f32 v64, v64, v66")
    round_bf16(64, 67)
    A("v_lshlrev_b32 v126, 16, v126\nv_add_f32 v64, v64, v126\nv_cvt_pk_bf16_f32 v64, v64, v64")
    A(f"buffer_store_short v64, v9, s[32:35], 0 offen{osc}")
    stamp(10)
    A("s_cmp_lg_u32 s2, 0\ns_cbranch_scc1 L_v_fin")
    A("v_lshlrev_b32 v13, 24, v0")
    A(f"buffer_store_dword v12, v13, s[8:11], 0 offen{osc}")
    A.label("L_v_fin")
    stamp(11)
    if stamps: A("s_add_u32 s3, s3, 4")
    stamps_out(range(12), 125)
    if amp is not None:
        A("s_sub_u32 s7, s3, 4\ns_or_b32 s7, s2, s7\ns_cmp_lg_u32 s7, 0\ns_cbranch_scc1 L_amp_end")
        A(f"v_readlane_b32 s40, v125, {amp[0]}\nv_readlane_b32 s41, v125, 0\nv_readlane_b32 s42, v125, 11")
        A(f"s_sub_u32 s40, s40, s41\ns_min_u32 s40, s40, 10000\ns_mul_i32 s40, s40, {amp[1]}")
        A.label("L_amp")
        A("s_memrealtime s[44:45]\ns_waitcnt lgkmcnt(0)\ns_sub_u32 s44, s44, s42\ns_cmp_lt_u32 s44, s40\ns_cbranch_scc1 L_amp")
        A.label("L_amp_end")
    A("s_endpgm")

    A.label("L_k")
    KB = 64
    FA, ONE = "v24", "v25"
    if kprio: A(f"s_setprio {kprio}")
    if wot: A("s_memrealtime s[52:53]")
    A(f"s_lshl_b32 s6, s4, 25\ns_add_u32 s6, s6, 0x1e00000\ns_add_u32 s7, s5, {crot}\ns_and_b32 s7, s7, 31\ns_lshl_b32 s7, s7, {CS}\ns_add_u32 s6, s6, s7")
    A("v_and_b32 v4, 7, v2\nv_lshlrev_b32 v4, 9, v4\nv_lshrrev_b32 v5, 3, v2\nv_lshl_add_u32 v4, v5, 6, v4\nv_lshl_add_u32 v4, v3, 4, v4")
    A(f"s_lshl_b32 s7, s3, {BS+2}\nv_add_u32 v4, s7, v4")
    A(f"s_mov_b32 s48, {1<<BS}\ns_mov_b32 s49, {2<<BS}\ns_mov_b32 s50, {3<<BS}")
    A(f"s_mov_b32 s42, {NREC}\ns_mov_b32 s43, 0x20000")
    A(f"s_mov_b32 s10, {WS_SIZE}\ns_mov_b32 s11, 0x20000")
    A("v_mov_b32 v8, 0\nv_mov_b32 v9, 0\nv_mov_b32 v10, 0\nv_mov_b32 v11, 0")
    A(f"v_lshlrev_b32 v7, 4, v2\nv_add_u32 v7, {L_AT}, v7")
    A("s_cmp_lg_u32 s3, 0\ns_cbranch_scc1 L_k_noz")
    A("ds_write_b128 v7, v[8:11]")
    A.label("L_k_noz")
    A("s_waitcnt lgkmcnt(0)")
    estamp(3)
    A("s_add_u32 s40, s18, s6\ns_addc_u32 s41, s19, 0")
    if wsoff: A(f"s_add_u32 s38, s38, {wsoff}\ns_addc_u32 s39, s39, 0")
    A("s_mov_b32 s8, s38\ns_mov_b32 s9, s39")
    A("s_load_dword s6, s[38:39], 0")
    if not b0late: A("s_barrier")
    estamp(4)
    so = ["0", "s48", "s49", "s50"]
    loads = []
    for tau in range(4):
        for t in range(4):
            r = KB + 16 * tau + 4 * t
            loads.append(f"buffer_load_dwordx4 v[{r}:{r+3}], v4, s[40:43], {so[tau]} offen offset:{128*t} nt")
    if kdelay: A(f"s_sleep {kdelay}")
    n0 = min(wk, 16) if wk else 16
    for ii, l in enumerate(loads[:n0]):
        if b0late and ii == b0late: A("s_barrier")
        A(l)
    if b0late >= n0: A("s_barrier")
    estamp(5)
    if stamps: A("v_mov_b32 v63, 0\ns_mov_b32 s100, 0")
    A("s_mov_b32 s20, 0x05040100\ns_mov_b32 s21, 0x07060302")
    A("s_mov_b32 s12, 0x07060500\ns_mov_b32 s13, 0x07060501\ns_mov_b32 s14, 0x07060502\ns_mov_b32 s15, 0x07060503")
    A("s_mov_b32 s58, 0x0c0c0400\ns_mov_b32 s59, 0x04000c0c")
    A("s_lshl_b32 s16, s4, 5\ns_add_u32 s16, s16, s5")
    A("s_mul_i32 s61, s4, 28\ns_min_u32 s7, s5, 27\ns_add_u32 s61, s61, s7")
    A("s_lshl_b32 s44, s4, 9\ns_lshl_b32 s45, s5, 3\ns_add_u32 s44, s44, s45\ns_mul_i32 s44, s44, 896")
    A("s_add_u32 s44, s24, s44\ns_addc_u32 s45, s25, 0")
    A("s_mul_i32 s46, s61, 7168\ns_add_u32 s46, s32, s46\ns_addc_u32 s47, s33, 0")
    A("s_lshl_b32 s7, s3, 8\ns_add_u32 s7, s7, 3584\nv_lshlrev_b32 v11, 4, v2\nv_add_u32 v11, s7, v11")
    A("v_cmp_eq_u32 vcc, 1, v3\nv_mov_b32 v13, 229376\nv_cndmask_b32 v13, 0, v13, vcc\nv_add_u32 v11, v11, v13")
    A("v_cmp_gt_u32 vcc, 2, v3")
    A("v_mov_b32 v6, s46\nv_mov_b32 v13, s44\nv_cndmask_b32 v6, v6, v13, vcc")
    A("v_mov_b32 v7, s47\nv_mov_b32 v13, s45\nv_cndmask_b32 v7, v7, v13, vcc")
    A("v_add_co_u32 v6, vcc, v6, v11\nv_addc_co_u32 v7, vcc, 0, v7, vcc")
    OW = 128
    A("v_lshrrev_b32 v16, 1, v3\nv_lshl_add_u32 v13, v2, 1, v16\ns_lshl_b32 s7, s3, 5\nv_add_u32 v13, s7, v13")
    A(f"s_lshl_b32 s7, s16, 5\ns_add_u32 s7, s7, {WS_H2}\nv_and_b32 v17, 1, v3\nv_lshlrev_b32 v8, 4, v17\nv_mov_b32 v11, {h2s}\nv_mad_u32_u24 v8, v13, v11, v8\nv_add_u32 v8, s7, v8")
    A(f"v_mov_b32 v11, {OOB}\nv_cmp_gt_u32 vcc, 112, v13\nv_cndmask_b32 v8, v11, v8, vcc")
    if hrot: A(f"v_add_u32 v13, {hrot}, v13")
    A("v_and_b32 v13, 7, v13\nv_cmp_eq_u32 vcc, s4, v13\nv_cndmask_b32 v22, v11, v8, vcc\nv_cndmask_b32 v21, v8, v11, vcc")
    A(f"v_bfe_u32 v18, v2, 2, 1\nv_lshlrev_b32 v9, 6, v18\nv_lshl_add_u32 v9, v3, 4, v9\nv_add_u32 v9, {L_AT}, v9")
    A("v_and_b32 v14, 1, v2\nv_lshlrev_b32 v13, 9, v14\nv_bfe_u32 v15, v2, 1, 1\nv_lshl_add_u32 v13, v15, 6, v13\nv_lshl_add_u32 v13, v3, 4, v13")
    A("v_lshlrev_b32 v15, 10, v16\nv_lshl_add_u32 v15, v14, 9, v15\nv_lshl_add_u32 v15, v17, 4, v15")
    A(f"s_lshl_b32 s7, s3, 7\ns_add_u32 s7, s7, {L_S}\nv_add_u32 v15, s7, v15")
    A("v_lshrrev_b32 v17, 1, v2\nv_cmp_eq_u32 s[60:61], v17, v16")
    A(f"v_lshlrev_b32 v18, 9, v18\nv_lshl_add_u32 v18, v14, 7, v18\nv_lshl_add_u32 v18, v3, 5, v18\nv_add_u32 v18, {L_S}, v18")
    A(f"s_lshl_b32 s7, s4, 13\ns_lshl_b32 s44, s3, 11\ns_add_u32 s7, s7, s44\ns_add_u32 s7, s7, {WS_Q}\nv_lshlrev_b32 v23, 4, v0\nv_add_u32 v19, s7, v23")
    A(f"s_lshl_b32 s7, s3, 8\nv_lshlrev_b32 v20, 3, v2\nv_lshl_add_u32 v20, v16, 7, v20\nv_and_b32 v17, 1, v3\nv_lshl_add_u32 v20, v17, 2, v20\nv_add_u32 v20, s7, v20")
    A("s_getreg_b32 s17, hwreg(HW_REG_XCC_ID, 0, 3)")
    A(f"v_add_u32 v23, {L_P}, v23")
    A(f"s_lshl_b32 s7, s16, 12\ns_add_u32 s7, s7, {WS_H1}\nv_and_b32 v14, 1, v0")
    A(f"v_lshrrev_b32 v17, 1, v0\nv_mul_u32_u24 v17, {rs1}, v17\nv_add_u32 v17, s7, v17\nv_lshl_add_u32 v16, v14, 5, v17")
    A(f"v_lshlrev_b32 v10, 4, v14\nv_lshl_add_u32 v10, v3, 2, v10\nv_add_u32 v10, {L_AT}, v10")
    if clean:
        NCL = rs1 * 8 // 16
        assert NCL + 4 <= 64
        A(f"s_lshl_b32 s7, s16, 12\ns_mul_i32 s44, s3, {rs1*8}\ns_add_u32 s7, s7, s44\ns_add_u32 s7, s7, {WS_H1}")
        A(f"s_lshl_b32 s44, s16, 8\ns_lshl_b32 s45, s3, 6\ns_add_u32 s44, s44, s45\ns_add_u32 s44, s44, {WS_Q - 16*NCL}")
        A(f"v_mov_b32 v172, s44\nv_mov_b32 v173, s7\nv_cmp_gt_u32 vcc, {NCL}, v0\nv_cndmask_b32 v172, v172, v173, vcc\nv_lshl_add_u32 v172, v0, 4, v172")
        A(f"v_cmp_gt_u32 vcc, {NCL+4}, v0\nv_cndmask_b32 v172, v11, v172, vcc")
        for i in range(4): A(f"v_mov_b32 v{168+i}, 0")
    A(f"v_mov_b32 {FA}, {L_F}\nv_mov_b32 {ONE}, 1")
    A("s_mov_b32 s23, 0")
    if gofs: A(f"s_waitcnt lgkmcnt(0)\ns_cmp_lt_u32 s4, 2\ns_cselect_b32 s7, {gofs}, 0\ns_add_u32 s52, s52, s7")
    for i in range(32):
        A(f"v_mov_b32 v{OW+i}, 0")
    def gload(so):
        fl = pfl if (qwt and so == "0") else gf
        if qwt: so = "0"
        if 'g' in abl: so = "s10"
        A(f"buffer_load_dwordx4 v[32:35], v19, s[8:11], {so} offen{fl}")
        A(f"buffer_load_dwordx4 v[36:39], v19, s[8:11], {so} offen offset:1024{fl}")
    for i in range(n0, 16):
        if i == gpos:
            stamp(2)
            gload("0")
        A(f"s_waitcnt vmcnt({wk-1 + (2 if i >= gpos else 0)})")
        if kt and i == ktn: twait("L_k_kt", 52, kt, 54, 56)
        if i == n0: estamp(6)
        if i == n0 + 3: estamp(7)
        if i == n0 + 6: estamp(8)
        A(loads[i])
        if i + 1 == kipos and kipos < 16: lds_inc(FA, ONE, F_KI)
    if gpos >= 16:
        if gt:
            lds_inc(FA, ONE, F_KI)
            A(f"s_waitcnt lgkmcnt(0)\ns_add_u32 s56, s52, {gt}")
            A.label("L_k_gt")
            A("s_memrealtime s[54:55]\ns_waitcnt lgkmcnt(0)\ns_sub_u32 s54, s54, s56\ns_cmp_gt_u32 s54, 0x80000000\ns_cbranch_scc1 L_k_gt")
        if gt2: twait("L_k_gt2", 52, gt2, 54, 56)
        if gdelay:
            if kipos >= 16: lds_inc(FA, ONE, F_KI)
            A(f"s_sleep {gdelay}")
        stamp(2)
        gload("0")
    A("s_waitcnt lgkmcnt(0)")
    epoch()
    A("v_and_b32 v14, 3, v0\nv_lshlrev_b32 v14, 3, v14\nv_bfe_u32 v5, v12, v14, 8")
    A("s_lshl_b32 s17, s17, 29\ns_and_b32 s7, s6, 0x1fffffff\ns_or_b32 s17, s17, s7\nv_mov_b32 v45, 0x1fffffff")
    if kdrain < wk: A(f"s_waitcnt vmcnt({kdrain + 2})")
    if kipos >= 16 and not gdelay and not gt: lds_inc(FA, ONE, F_KI)
    stamp(1)
    GB = 24
    A(f"s_waitcnt vmcnt({max(16 - gpos, 0)})")
    A("s_branch L_k_qc")
    A.label("L_k_q")
    A(f"s_and_b32 s7, s23, {qslow}\ns_cmp_eq_u32 s7, {qslow}\ns_cselect_b32 s7, {WS_QB - WS_Q}, 0")
    A("s_mov_b64 exec, s[0:1]")
    gload("s7")
    A("s_mov_b64 exec, -1")
    A(f"s_add_u32 s23, s23, 1\ns_cmp_gt_u32 s23, {spin_max}\ns_cbranch_scc1 L_end")
    A("s_waitcnt vmcnt(0)")
    A.label("L_k_qc")
    A("v_perm_b32 v40, v33, v32, s58\nv_perm_b32 v41, v35, v34, s59\nv_perm_b32 v42, v37, v36, s58\nv_perm_b32 v43, v39, v38, s59")
    A("v_xor_b32 v40, v40, v41\nv_xor_b32 v42, v42, v43\nv_xor_b32 v40, s17, v40\nv_xor_b32 v42, s17, v42\nv_or_b32 v40, v40, v42")
    A("v_and_b32 v41, v45, v40\nv_cmp_ne_u32 s[0:1], 0, v41\nv_cmp_ne_u32 vcc, 0, v40")
    if 'g' in abl: A("s_mov_b64 vcc, 0")
    elif not noq: A("s_cmp_lg_u64 s[0:1], 0\ns_cbranch_scc1 L_k_q")
    if not force_slow:
        A("s_cbranch_vccnz L_k_mix")
        lds_inc(FA, ONE, F_FAST)
        A.label("L_k_mix")
    if tries: A("v_writelane_b32 v63, s23, 15")
    if mask:
        for i in range(8):
            A(f"v_and_b32 v{32+i}, 0xffffff00, v{32+i}")
    for i in range(4):
        A(f"v_permlane32_swap_b32 v{32+i}, v{36+i}")
    A(f"v_pk_add_f32 {pr(32)}, {pr(32)}, {pr(36)}\nv_pk_add_f32 {pr(34)}, {pr(34)}, {pr(38)}")
    A("v_permlane16_swap_b32 v32, v34\nv_permlane16_swap_b32 v33, v35")
    A(f"v_pk_add_f32 {pr(32)}, {pr(32)}, {pr(34)}\nv_cvt_pk_bf16_f32 v32, v32, v33")
    A("ds_write_b32 v20, v32")
    lds_inc(FA, ONE, F_Q)
    stamp(3)
    lds_wait("L_k_wq", "s_cmp_lt_u32 s7, 4", F_Q, "s23", "v28", FA)
    QB, DB = 32, 48
    if stamps: A("v_mov_b32 v31, v63")
    for t in range(4):
        A(f"ds_read_b128 v[{QB+4*t}:{QB+4*t+3}], v13 offset:{L_Q + 128*t}")
    A("s_waitcnt vmcnt(0) lgkmcnt(0)")
    for t in range(4):
        for tau in range(4):
            r = KB + 16 * tau + 4 * t
            c = "0" if t == 0 else f"v[{DB+4*tau}:{DB+4*tau+3}]"
            A(f"v_mfma_f32_16x16x32_bf16 v[{DB+4*tau}:{DB+4*tau+3}], v[{r}:{r+3}], v[{QB+4*t}:{QB+4*t+3}], {c}")
    A("s_mov_b64 exec, s[60:61]")
    for tau in range(4):
        A(f"ds_write_b128 v15, v[{DB+4*tau}:{DB+4*tau+3}] offset:{32*tau}")
    A(f"s_mov_b64 exec, 1\nds_add_u32 {FA}, {ONE}\ns_mov_b64 exec, -1")
    stamp(4)
    A(f"s_mov_b32 s62, {f32(LOG2E/16)}")
    A(f"s_cmp_lg_u32 s3, {smw}\ns_cbranch_scc1 L_k_nsm")
    lds_wait("L_k_w1", "s_cmp_lt_u32 s7, 4", F_SC, "s23", "v28", FA)
    for part in range(2):
        for sg in range(2):
            for hf in range(2):
                r = 64 + 16 * part + 8 * sg + 4 * hf
                A(f"ds_read_b128 v[{r}:{r+3}], v18 offset:{1024*part + 256*sg + 16*hf}")
    A("s_waitcnt lgkmcnt(0)")
    for i in range(8):
        A(f"v_pk_add_f32 {pr(64+2*i)}, {pr(64+2*i)}, {pr(80+2*i)}")
    for i in range(8):
        A(f"v_cvt_pk_bf16_f32 v{80+i}, v{64+2*i}, v{65+2*i}")
    for i in range(8):
        A(f"v_lshlrev_b32 v{64+2*i}, 16, v{80+i}")
        A(f"v_and_b32 v{65+2*i}, 0xffff0000, v{80+i}")
    A("v_max3_f32 v96, v64, v65, v66\nv_max3_f32 v97, v67, v68, v69\nv_max3_f32 v98, v70, v71, v72\nv_max3_f32 v99, v73, v74, v75")
    A("v_max3_f32 v96, v96, v76, v77\nv_max3_f32 v97, v97, v78, v79\nv_max3_f32 v96, v96, v97, v98\nv_max_f32 v96, v96, v99")
    A(f"v_max_f32_dpp v96, v96, v96 quad_perm:[1,0,3,2] {DPPM}")
    swapadd(16, 96, 97, "max")
    swapadd(32, 96, 97, "max")
    A("v_mul_f32 v97, s62, v96")
    for i in range(16):
        A(f"v_fma_f32 v{64+i}, v{64+i}, s62, -v97")
    for i in range(16):
        A(f"v_exp_f32 v{64+i}, v{64+i}")
    for i in range(8):
        A(f"v_cvt_pk_bf16_f32 v{PA+i}, v{64+2*i}, v{65+2*i}")
    A(f"ds_write_b128 v23, v[{PA}:{PA+3}]\nds_write_b128 v23, v[{PA+4}:{PA+7}] offset:1024")
    for i in range(4):
        A(f"v_pk_add_f32 {pr(64+2*i)}, {pr(64+2*i)}, {pr(72+2*i)}")
    for i in range(2):
        A(f"v_pk_add_f32 {pr(64+2*i)}, {pr(64+2*i)}, {pr(68+2*i)}")
    A("v_pk_add_f32 v[64:65], v[64:65], v[66:67]\nv_add_f32 v98, v64, v65")
    A(f"v_add_f32_dpp v98, v98, v98 quad_perm:[1,0,3,2] {DPPM}")
    swapadd(16, 98, 97)
    swapadd(32, 98, 97)
    A(f"v_mov_b32_dpp v108, v96 row_newbcast:0 {DPPM}\nv_mov_b32_dpp v109, v98 row_newbcast:0 {DPPM}")
    A(f"v_mov_b32_dpp v110, v96 row_newbcast:4 {DPPM}\nv_mov_b32_dpp v111, v98 row_newbcast:4 {DPPM}")
    A("ds_write_b128 v23, v[108:111] offset:2048")
    A(f"ds_write_b32 {FA}, {ONE} offset:{F_P}")
    stamp(6)
    A.label("L_k_nsm")
    if not novi: lds_wait("L_k_wvi", "s_cmp_lt_u32 s7, 4", F_VI, "s23", "v28", FA, sleep=visleep)
    if wot:
        A(f"s_add_u32 s52, s52, {wot}")
        A.label("L_k_wt")
        A("s_memrealtime s[54:55]\ns_waitcnt lgkmcnt(0)\ns_sub_u32 s54, s54, s52\ns_cmp_gt_u32 s54, 0x80000000\ns_cbranch_scc1 L_k_wt")
    A(f"s_setprio {kprio2}")
    A("s_mov_b32 s25, 0xffff\ns_cmp_eq_u32 s3, 3\ns_cselect_b32 s24, 0x00ff00ff, -1\ns_cselect_b32 s25, 0xff, s25")
    A("s_mov_b64 exec, s[24:25]")
    for e in range(8):
        if wod and e and e % wost == 0: twait(f"L_k_wt{e}", 52, wod * e, 54, 56)
        A(f"global_load_dwordx4 v[{OW+4*e}:{OW+4*e+3}], v[6:7], off offset:{896*e - 3584}{wflag}")
    A("s_mov_b64 exec, -1")
    stamp(5)
    A(f"s_cmp_eq_u32 s3, {ffw}\ns_cbranch_scc1 L_k_ffn")
    if warm1:
        A("s_cmp_lg_u32 s3, 3\ns_cbranch_scc1 L_k_perm")
        wf = pfl if h1wt else w1f
        A(f"buffer_load_dwordx4 v[160:163], v16, s[8:11], 0 offen{wf}")
        A(f"buffer_load_dwordx4 v[164:167], v17, s[8:11], 0 offen offset:64{wf}")
    A("s_branch L_k_perm")
    A.label("L_k_ffn")
    A("v_mov_b32 v32, 0")
    A("s_cmp_gt_u32 s5, 27\ns_cbranch_scc1 L_k_hw")
    if 's' in abl: A("s_branch L_k_hw")
    A(f"s_mul_i32 s7, s4, 28\ns_add_u32 s7, s7, s5\ns_lshl_b32 s7, s7, 8\ns_add_u32 s7, s7, {WS_PF}\ns_add_u32 s18, s8, s7\ns_addc_u32 s19, s9, 0")
    A.label("L_k_gf")
    for i in range(4):
        A(f"s_load_dwordx16 s[{GB+16*i}:{GB+16*i+15}], s[18:19], {64*i} glc")
    A("s_add_u32 s23, s23, 1")
    A(f"s_cmp_gt_u32 s23, {spin_max}\ns_cbranch_scc1 L_end")
    A("s_waitcnt lgkmcnt(0)")
    for i in range(64):
        A(f"v_writelane_b32 v13, s{GB+i}, {i}")
    A("v_and_b32 v14, 0xff, v13\nv_cmp_ne_u32 vcc, v14, v5")
    A("s_cbranch_vccnz L_k_gf")
    if mask: A("v_and_b32 v13, 0xffffff00, v13")
    A(f"v_add_f32_dpp v13, v13, v13 row_ror:8 {DPPM}")
    swapadd(16, 13, 14)
    A("v_mov_b32 v14, v13\nv_permlane32_swap_b32 v13, v14")
    A("v_cvt_pk_bf16_f32 v34, v13, v14\nv_lshlrev_b32 v32, 16, v34\nv_and_b32 v33, 0xffff0000, v34")
    A(f"v_mul_f32 v34, {f32(-LOG2E)}, v32\nv_exp_f32 v34, v34\nv_add_f32 v34, 1.0, v34\nv_rcp_f32 v34, v34\nv_mul_f32 v32, v32, v34")
    round_bf16(32, 34)
    A("v_mul_f32 v32, v32, v33")
    A(f"v_mov_b32_dpp v33, v32 quad_perm:[1,1,3,3] {DPPM}")
    A("v_cvt_pk_bf16_f32 v32, v32, v33")
    A.label("L_k_hw")
    A(f"v_lshlrev_b32 v33, 1, v0\nv_add_u32 v33, {L_AT + 96}, v33")
    A("s_mov_b64 exec, 0x55")
    A("ds_write_b32 v33, v32")
    A(f"s_mov_b64 exec, 1\nds_write_b32 {FA}, {ONE} offset:{F_H}\ns_mov_b64 exec, -1")
    stamp(6)
    A.label("L_k_perm")
    A(f"s_mov_b32 s58, 0x0c0c0400\ns_mov_b32 s59, 0x04000c0c\ns_mov_b32 s62, {f32(LOG2E/16)}\ns_mul_i32 s64, s6, 3\ns_mov_b64 s[66:67], -1")
    A("s_mov_b32 s68, 0xaaaaaaaa\ns_mov_b32 s69, 0xaaaaaaaa\ns_mov_b32 s48, 0\ns_mov_b32 s49, -1")
    if stamps and not early: A("s_mov_b32 s72, 0\ns_mov_b32 s74, 0")
    FB2 = 64
    A(f"ds_read_b32 v23, {FA} offset:{F_FAST}")
    A("s_waitcnt vmcnt(0) lgkmcnt(0)")
    for p in range(4):
        ra = OW + 8 * p; rb = ra + 4
        for q in range(4):
            A(f"v_perm_b32 v{FB2 + 4*(2*q) + p}, v{rb+q}, v{ra+q}, s20")
            A(f"v_perm_b32 v{FB2 + 4*(2*q+1) + p}, v{rb+q}, v{ra+q}, s21")
    A(f"v_readfirstlane_b32 s1, v23\ns_cmp_eq_u32 s1, 4\ns_cselect_b32 s0, 0, {WS_H1B - WS_H1}")
    stamp(7)
    if not h1v: lds_wait("L_k_wst", "s_cmp_lt_u32 s7, 4", F_ST, "s23", "v28", FA)
    stamp(8)
    if not h1v: hop1("L_k", FA, ONE, "v16", "v17", "v10", "s58", "s59", "s62", "s64", 66, 68, "s0", "s23", "v28", "s_sub_u32 s7, 3, s3")
    A.label("L_k_w3")
    A(f"ds_read_b64 v[26:27], {FA} offset:{F_O}")
    A("ds_read_b128 v[28:31], v9") if not stamps else A("ds_read_b128 v[36:39], v9")
    AT = 36 if stamps else 28
    A("s_add_u32 s23, s23, 1")
    A("s_waitcnt lgkmcnt(0)")
    A("v_and_b32 v26, v26, v27")
    A("v_readfirstlane_b32 s7, v26")
    A(f"s_cmp_gt_u32 s23, {spin_max}\ns_cbranch_scc1 L_end")
    A("s_cmp_eq_u32 s7, 0\ns_cbranch_scc1 L_k_w3")
    stamp(10)
    for i in range(8):
        A(f"v_mfma_f32_16x16x32_bf16 v[{96+4*i}:{99+4*i}], v[{AT}:{AT+3}], v[{FB2+4*i}:{FB2+4*i+3}], 0")
    for k in range(4):
        A(f"v_cndmask_b32 v{32+k}, v{96+4*k}, v{112+4*k}, s[48:49]")
    for k in range(4):
        A(f"v_perm_b32 v{32+k}, v{32+k}, v12, s{12+k}")
    if own2:
        A("s_cmp_lg_u32 s1, 4\ns_cbranch_scc1 L_k_st1")
        A("buffer_store_dwordx4 v[32:35], v21, s[8:11], 0 offen sc1")
        A("buffer_store_dwordx4 v[32:35], v22, s[8:11], 0 offen")
        A("s_branch L_k_st2")
        A.label("L_k_st1")
    A("buffer_store_dwordx4 v[32:35], v8, s[8:11], 0 offen sc1")
    if own2: A.label("L_k_st2")
    lds_inc(FA, ONE, F_PUB)
    if clean > 1: A(f"s_sleep {clean}")
    if clean: A("buffer_store_dwordx4 v[168:171], v172, s[8:11], 0 offen sc1")
    stamp(11)
    if wbl:
        A(f"s_cmp_lg_u32 s5, {wbl}\ns_cbranch_scc1 L_k_nwb\ns_cmp_lg_u32 s3, 0\ns_cbranch_scc1 L_k_nwb")
        A("buffer_wbl2 sc1\ns_waitcnt vmcnt(0)")
        stamp(9)
        A.label("L_k_nwb")
    stamps_out(range(12), 31)
    A.label("L_end")
    A("s_endpgm")
    A.raw('.section .rodata,"a"\n.p2align 6')
    A.raw(f".amdhsa_kernel {KNAME}\n  .amdhsa_next_free_vgpr 192\n  .amdhsa_next_free_sgpr 102\n  .amdhsa_accum_offset 192\n  .amdhsa_group_segment_fixed_size 0\n  .amdhsa_kernarg_size 96\n  .amdhsa_user_sgpr_count 2\n  .amdhsa_user_sgpr_kernarg_segment_ptr 1\n  .amdhsa_system_sgpr_workgroup_id_x 1\n.end_amdhsa_kernel")
    return E.text()

if __name__ == "__main__":
    out = sys.argv[1] if len(sys.argv) > 1 else "recurrent_scan__sliding_block_cached__swiglu_ffn__decode.s"
    kw = {}
    for a in sys.argv[2:]:
        k, v = a.split("=", 1)
        kw[k] = eval(v)
    open(out, "w").write(gen(**kw))
```

```python
import sys
sys.path.insert(0, "dev")
from emit import Emitter
import struct

KNAME = "recurrent_scan__sliding_block_cached__swiglu_ffn__decode_kernel"
HEADER = open("recurrent_scan__sliding_block_cached__swiglu_ffn__decode.s.ref").read().split("; Override launch geometry")[0]

WS_TB    = 0x10000
WS_PF    = 0x20000
WS_Q     = 0x80000
WS_QB    = 0x90000
WS_H1B   = 0x300000
WS_H1    = 0x100000
WS_H2    = 0x200000
WS_DBG   = 0x400000
WS_SIZE  = 0x1000000
OOB      = 0x7ffffff0
L_Q, L_S, L_AT, L_F, L_P = 0x000, 0x400, 0xC00, 0xC80, 0x1000
L_C2 = 0x1C00
F_SC, F_FAST, F_O, F_H, F_PUB, F_ST, F_VI, F_KI, F_Q, F_P, F_C2, F_QP, F_D = [4 * i for i in range(13)]
LOG2E = 1.4426950408889634
def f32(x): return "0x%08x" % struct.unpack("<I", struct.pack("<f", x))[0]
DPPM = "row_mask:0xf bank_mask:0xf"
def pr(i): return f"v[{i}:{i+1}]"

def gen(prew=False, qslow=1, gpos=16, kipos=16, gdelay=0, stamps=False, wflag=" nt", tflag=" nt", stagger1=2, stagger2=3, spin_max=1 << 18, kprio=1, vprio=3, kprio2=3, vprio2=2,
        kdelay=0, fdelay=4, wk=7, wv=8, kdrain=7, ilv=1, rsleep=4, qdelay=40, kisleep=1, visleep=1, warm1=True, force_slow=False,
        amp=None, tries=False, mask=True, h1p=4, h1sleep=0, smw=1, ffw=0, vwo=0, noq=0, h2s=8192, split2=1, p2w='pub', warm2=0, early=False, vwl=8, b0late=2, wot=560, h1v=1, rs1=80, warm1e=0, wbl=0, osc='', clean=0, own2=1, h1wt=0, qwt=0, pfl=' sc0', p2d=0, p2s=0, h1d=0, gt=0, hrot=0, crot=0, call=0, gux=0, wqx=4, qsx=16, gofs=0, vt=0, vt2=0, kt=0, ktn=11, w1f=' nt', xf='', gf=' sc1', h1f=' sc1', w2f=' sc1', wsoff=0, abl='', wod=0, wost=1, novi=0, gt2=0, fq=0, pp2=0, sw2=-1, swf='', vdl=0, kdl=0, vdn=16, kdn=16, kp=0, kp0=100, vp=0, vp0=0, kpw=0, vpw=0, nki=0, hp=0, hpc=2, hps=1, lb=0, gf0=None, h1t=0, p2t=0, h1f0=None, pt='', ptw=2, ptf=' nt', ptb=0, w1d=0, qsf=' sc1', qpf='', h1sf='', h2sf=' sc1', h2of='', p2f=' sc1', gam=None, clk=0, kn0=2, pt1='', spt='', sptt=0, sptc=32, g0kp=0, g0k0=None, g0m=1, p4=0, ia=0, hops='', h2h=0, vb=0, vfl=' nt', g0vp=0, g0v0=0, garg=0, grel=0, gsel=None, dyn=None, wr=22, w0=1, tbn=3, tbt=(100,), tbpw=3, tbw=150, qh=0, qhn=12, tbc=1, late=None, tbs=128, tbl=16, tbg="", tbf=' sc1'):
    NC = 56 if lb else 112
    if lb: h2s = 16384
    E = Emitter()
    A = E
    def spair(i):
        return 88 + 2 * i if i < 7 else 70 + 2 * (i - 7)
    def estamp(i):
        if stamps and early:
            p = spair(i)
            A(f"s_memrealtime s[{p}:{p+1}]")
    def stamp(i):
        if stamps and not (early and i >= 3):
            p = spair(i)
            A(f"s_memrealtime s[{p}:{p+1}]")
    def stamps_out(idx, vreg):
        if not stamps: return
        A("s_waitcnt lgkmcnt(0)")
        for i in idx:
            A(f"v_writelane_b32 v{vreg}, s{spair(i)}, {i}")
        A(f"s_lshl_b32 s7, s2, 10\ns_lshl_b32 s40, s3, 6\ns_add_u32 s7, s7, s40\ns_add_u32 s7, s7, {WS_DBG}")
        A(f"v_lshlrev_b32 v1, 2, v0\nv_add_u32 v1, s7, v1\nv_cmp_gt_u32 vcc, 16, v0\nv_mov_b32 v2, {OOB}\nv_cndmask_b32 v1, v2, v1, vcc")
        A(f"buffer_store_dword v{vreg}, v1, s[8:11], 0 offen" + (" sc1" if gam else ""))

    def allreduce16(regs, op="add"):
        for mod in ("quad_perm:[1,0,3,2]", "quad_perm:[2,3,0,1]", "row_ror:4", "row_ror:8"):
            for r in regs:
                A(f"v_{op}_f32_dpp v{r}, v{r}, v{r} {mod} {DPPM}")

    def wave_sum_to_sgpr(r, s):
        allreduce16([r])
        A(f"v_add_f32_dpp v{r}, v{r}, v{r} row_bcast:15 row_mask:0xa bank_mask:0xf")
        A(f"v_add_f32_dpp v{r}, v{r}, v{r} row_bcast:31 row_mask:0xc bank_mask:0xf")
        A(f"v_readlane_b32 s{s}, v{r}, 63")

    def round_bf16(r, t):
        A(f"v_cvt_pk_bf16_f32 v{t}, v{r}, v{r}")
        A(f"v_and_b32 v{r}, 0xffff0000, v{t}")

    def swapadd(kind, r, t, op="add"):
        A(f"v_mov_b32 v{t}, v{r}\nv_permlane{kind}_swap_b32 v{r}, v{t}\nv_{op}_f32 v{r}, v{r}, v{t}")

    def lds_wait(label, cmp, off, cnt, tmp, addr, sleep=0):
        if sleep:
            A(f"s_branch {label}_e")
            A.label(label)
            A(f"s_sleep {sleep}")
            A.label(label + "_e")
        else:
            A.label(label)
        A(f"ds_read_b32 {tmp}, {addr}" + (f" offset:{off}" if off else ""))
        A(f"s_add_u32 {cnt}, {cnt}, 1")
        A("s_waitcnt lgkmcnt(0)")
        A(f"v_readfirstlane_b32 s7, {tmp}")
        A(f"s_cmp_gt_u32 {cnt}, {spin_max}\ns_cbranch_scc1 L_end")
        A(f"{cmp}\ns_cbranch_scc1 {label}")

    def lds_inc(addr, one, off):
        A(f"s_mov_b64 exec, 1\nds_add_u32 {addr}, {one}" + (f" offset:{off}" if off else "") + "\ns_mov_b64 exec, -1")

    def twait(label, base, t, tmp, thr):
        A(f"s_add_u32 s{thr}, s{base}, {t}")
        A.label(label)
        A(f"s_memrealtime s[{tmp}:{tmp+1}]\ns_waitcnt lgkmcnt(0)\ns_sub_u32 s{tmp}, s{tmp}, s{thr}\ns_cmp_gt_u32 s{tmp}, 0x80000000\ns_cbranch_scc1 {label}")

    def gwait(label, base, t, t0, sel, tmp, thr):
        if t0 == t: return twait(label, base, t, tmp, thr)
        A(f"s_mul_i32 s{thr}, s{sel}, {(t0 - t) & 0xffffffff}\ns_add_u32 s{thr}, s{thr}, s{base}\ns_add_u32 s{thr}, s{thr}, {t}")
        A.label(label)
        A(f"s_memrealtime s[{tmp}:{tmp+1}]\ns_waitcnt lgkmcnt(0)\ns_sub_u32 s{tmp}, s{tmp}, s{thr}\ns_cmp_gt_u32 s{tmp}, 0x80000000\ns_cbranch_scc1 {label}")
    def dwait(label, base, t, step, FA, vt, tmp, thr):
        if dyn is None: return twait(label, base, t, tmp, thr)
        W = 16 if step is None else min(16, int(round(16.0 * (step + w0) / wr)))
        A.label(label)
        A(f"ds_read_b32 {vt}, {FA} offset:{F_D}\ns_memrealtime s[{tmp}:{tmp+1}]\ns_waitcnt lgkmcnt(0)\nv_readfirstlane_b32 s{thr}, {vt}")
        if W < 16: A(f"s_mul_i32 s{thr}, s{thr}, {W}\ns_lshr_b32 s{thr}, s{thr}, 4")
        A(f"s_sub_u32 s{tmp}, s{tmp}, s{base}\ns_add_u32 s{tmp}, s{tmp}, s{thr}\ns_cmp_lt_i32 s{tmp}, {t}\ns_cbranch_scc1 {label}")
    K0 = kp0 if g0k0 is None else g0k0
    KP = g0kp or kp
    GSH = int(kp0 + 30 * kp) - int(K0 + 30 * KP)
    if g0vp: GSH = int(16 * (kp - g0vp)) + g0v0

    CH = {}
    if 'a' in hops: CH['P1'] = 'L_v_b0'
    if 'b' in hops: CH['P2'] = 'L_v_b0'
    if 'c' in hops: CH['P5'] = 'L_k'
    if 'd' in hops: CH['P6'] = 'L_k'
    if 'e' in hops: CH['P7'] = 'L_k'
    if 'f' in hops: CH['P3'] = 'P4'; CH['P4'] = 'L_v_r2'
    if 'g' in hops: CH['P8'] = 'L_v_r2'
    def pad(name, inline=True, page=False):
        if name not in CH and not (page and ia): return
        if inline: A(f"s_branch {name}_o")
        if page and ia: A.raw(".p2align 12")
        if name in CH:
            A.label(name)
            A(f"s_branch {CH[name]}")
        if inline: A.label(name + "_o")

    def epoch():
        A("s_mul_i32 s6, s6, 1664525\ns_add_u32 s6, s6, 1013904223\ns_or_b32 s6, s6, 1")
        A("v_mov_b32 v12, s6")

    def hop1(pf, FA, ONE, VA, VS, VW, S0, S1, SC, ST3, SEX, SAA, SOFF, SSP, TV, stg):
        ex = f"s[{SEX}:{SEX+1}]"; aa = f"s[{SAA}:{SAA+1}]"
        if h1p < 4: A(f"s_cmp_lt_u32 s3, {4 - h1p}\ns_cbranch_scc1 {pf}_h1done")
        if stagger1:
            A(stg)
            A.label(f"{pf}_stg")
            A(f"s_cmp_eq_u32 s7, 0\ns_cbranch_scc1 {pf}_p1")
            A(f"s_sleep {stagger1}\ns_sub_u32 s7, s7, 1\ns_branch {pf}_stg")
        P = 128
        T = P + 12
        def pl(so, fl):
            A(f"buffer_load_dwordx4 v[{P}:{P+3}], {VA}, s[8:11], {so} offen{fl}")
            A(f"buffer_load_dwordx4 v[{P+4}:{P+7}], {VA}, s[8:11], {so} offen offset:16{fl}")
            A(f"buffer_load_dwordx4 v[{P+8}:{P+11}], {VS}, s[8:11], {so} offen offset:64{fl}")
        def tagsum():
            for k in range(3):
                r = P + 4 * k
                A(f"v_perm_b32 v{T+2*k}, v{r+1}, v{r}, {S0}\nv_perm_b32 v{T+1+2*k}, v{r+3}, v{r+2}, {S1}")
            A(f"v_add3_u32 v{T}, v{T}, v{T+1}, v{T+2}\nv_add3_u32 v{T+3}, v{T+3}, v{T+4}, v{T+5}\nv_add_u32 v{T}, v{T}, v{T+3}")
        if hp:
            A.label(f"{pf}_p1")
            A("s_waitcnt vmcnt(54)")
            pl(SOFF, h1f)
            A(f"s_add_u32 {SSP}, {SSP}, 1")
            A(f"s_cmp_gt_u32 {SSP}, {spin_max}\ns_cbranch_scc1 L_end")
            for c_ in range(hpc):
                A(f"ds_read_b32 {TV}, {FA} offset:{F_O}")
                if hps: A(f"s_sleep {hps}")
                tagsum()
                A(f"v_cmp_ne_u32 vcc, {ST3}, v{T}")
                A(f"s_cbranch_vccz {pf}_p1ok")
                A("s_waitcnt lgkmcnt(0)")
                A(f"v_readfirstlane_b32 s7, {TV}")
                A(f"s_cmp_lg_u32 s7, 0\ns_cbranch_scc1 {pf}_h1done")
            A(f"s_branch {pf}_p1")
            A.label(f"{pf}_p1ok")
        else:
            if h1f0 is not None:
                A.label(f"{pf}_p1")
                pl(SOFF, h1f0)
                A(f"s_branch {pf}_p1c")
                A.label(f"{pf}_p1r")
            else:
                A.label(f"{pf}_p1")
                A.label(f"{pf}_p1r")
            A(f"s_mov_b64 exec, {ex}")
            if h1wt:
                A(f"s_cmp_lg_u32 {SOFF}, 0\ns_cbranch_scc1 {pf}_p1s")
                pl("0", pfl)
                A(f"s_branch {pf}_p1j")
                A.label(f"{pf}_p1s")
                pl("0", " sc1")
                A.label(f"{pf}_p1j")
            else:
                pl(SOFF, h1f)
            A.label(f"{pf}_p1c")
            A(f"ds_read_b32 {TV}, {FA} offset:{F_O}")
            A(f"s_add_u32 {SSP}, {SSP}, 1")
            A("s_waitcnt lgkmcnt(0)")
            A(f"v_readfirstlane_b32 s7, {TV}")
            A(f"s_cmp_lg_u32 s7, 0\ns_cbranch_scc1 {pf}_h1done")
            A(f"s_cmp_gt_u32 {SSP}, {spin_max}\ns_cbranch_scc1 L_end")
            A("s_waitcnt vmcnt(0)")
            tagsum()
            A(f"v_cmp_ne_u32 {ex}, {ST3}, v{T}")
            A(f"s_cmp_lg_u64 {ex}, 0")
            A(f"s_cbranch_scc1 {pf}_p1r")
            A("s_mov_b64 exec, -1")
        stamp(9 if pf == "L_k" else 2)
        M_, L_, X_, Y_ = T + 1, T + 2, T + 3, T + 4
        A(f"v_cndmask_b32 v{M_}, v{P+8}, v{P+10}, {aa}\nv_cndmask_b32 v{L_}, v{P+9}, v{P+11}, {aa}")
        A(f"v_and_b32 v{M_}, 0xffff0000, v{M_}")
        A(f"v_max_f32_dpp v{X_}, v{M_}, v{M_} quad_perm:[2,3,0,1] {DPPM}")
        A(f"v_max_f32_dpp v{X_}, v{X_}, v{X_} row_ror:4 {DPPM}")
        A(f"v_max_f32_dpp v{X_}, v{X_}, v{X_} row_ror:8 {DPPM}")
        swapadd(16, X_, Y_, "max")
        swapadd(32, X_, Y_, "max")
        A(f"v_sub_f32 v{M_}, v{M_}, v{X_}\nv_mul_f32 v{M_}, {SC}, v{M_}\nv_exp_f32 v{M_}, v{M_}")
        A(f"v_mul_f32 v{L_}, v{L_}, v{M_}")
        P0 = P
        if hp: P = 148
        for i in range(8):
            A(f"v_mul_f32 v{P+i}, v{P0+i}, v{M_}")
        A(f"v_add_f32_dpp v{L_}, v{L_}, v{L_} quad_perm:[2,3,0,1] {DPPM}")
        for i in range(4):
            A(f"v_permlane32_swap_b32 v{P+i}, v{P+4+i}")
        A(f"v_add_f32_dpp v{L_}, v{L_}, v{L_} row_ror:4 {DPPM}")
        A(f"v_pk_add_f32 {pr(P)}, {pr(P)}, {pr(P+4)}\nv_pk_add_f32 {pr(P+2)}, {pr(P+2)}, {pr(P+6)}")
        A(f"v_add_f32_dpp v{L_}, v{L_}, v{L_} row_ror:8 {DPPM}")
        A(f"v_permlane16_swap_b32 v{P}, v{P+2}\nv_permlane16_swap_b32 v{P+1}, v{P+3}")
        A(f"v_mov_b32 v{Y_}, v{L_}")
        A(f"v_pk_add_f32 {pr(P)}, {pr(P)}, {pr(P+2)}")
        A(f"v_permlane16_swap_b32 v{L_}, v{Y_}\nv_add_f32 v{L_}, v{L_}, v{Y_}")
        for mod in ("quad_perm:[2,3,0,1]", "row_ror:4", "row_ror:8"):
            A(f"v_add_f32_dpp v{P}, v{P}, v{P} {mod} {DPPM}")
            A(f"v_add_f32_dpp v{P+1}, v{P+1}, v{P+1} {mod} {DPPM}")
            if mod == "quad_perm:[2,3,0,1]":
                swapadd(32, L_, Y_)
                A(f"v_rcp_f32 v{L_}, v{L_}")
        A(f"v_mul_f32 v{P}, v{P}, v{L_}\nv_mul_f32 v{P+1}, v{P+1}, v{L_}\nv_cvt_pk_bf16_f32 v{P}, v{P}, v{P+1}")
        A(f"s_mov_b32 s{SEX}, 0x00030003\ns_mov_b32 s{SEX+1}, 0x00030003\ns_mov_b64 exec, {ex}")
        A(f"ds_write_b32 {VW}, v{P}")
        A("s_mov_b64 exec, 1")
        A(f"ds_write_b32 {FA}, {ONE} offset:{F_O}")
        A.label(f"{pf}_h1done")
        A("s_mov_b64 exec, -1")

    NPW = 5 if prew else 0
    BS, CS = (17, 12) if ilv else (12, 16)
    NREC = (15 << BS) + 4096

    A.raw(HEADER.rstrip())
    A.raw("; @launch grid=(256,1,1) block=(512,1,1) lds=8192")
    A.raw('.amdgcn_target "amdgcn-amd-amdhsa--gfx950"')
    A.raw(".text")
    if ia: A.raw(".p2align 12")
    A.raw(f".globl {KNAME}\n.p2align 8\n.type {KNAME},@function\n{KNAME}:")
    A("s_cmp_ge_u32 s2, 256")
    A("s_cbranch_scc1 L_end")
    if late:
        A(f"s_and_b32 s4, s2, 7\ns_lshr_b32 s4, {late[0]}, s4\ns_bitcmp1_b32 s4, 0\ns_cbranch_scc0 L_late_e\ns_memrealtime s[4:5]\ns_waitcnt lgkmcnt(0)")
        A.label("L_late")
        A(f"s_memrealtime s[6:7]\ns_waitcnt lgkmcnt(0)\ns_sub_u32 s6, s6, s4\ns_cmp_lt_u32 s6, {late[1]}\ns_cbranch_scc1 L_late")
        A.label("L_late_e")
    A("s_load_dwordx16 s[16:31], s[0:1], 0")
    A("s_load_dwordx8 s[32:39], s[0:1], 64")
    stamp(0)
    A("v_lshrrev_b32 v1, 6, v0")
    A("v_and_b32 v0, 63, v0")
    A("v_readfirstlane_b32 s3, v1")
    if hrot: A(f"s_add_u32 s4, s2, {hrot}\ns_and_b32 s4, s4, 7")
    else: A("s_and_b32 s4, s2, 7")
    A("s_lshr_b32 s5, s2, 3")
    if call: A(f"s_add_u32 s5, s5, {call}\ns_and_b32 s5, s5, 31")
    A("v_and_b32 v2, 15, v0")
    A("v_lshrrev_b32 v3, 4, v0")
    KH = [(w, p) for w, p in ((1, 'P5'), (2, 'P6'), (3, 'P7')) if p in CH]
    if KH:
        A("s_cmp_ge_u32 s3, 4\ns_cbranch_scc1 L_ve")
        if wot: A("s_memrealtime s[52:53]")
        for w, p in KH: A(f"s_cmp_eq_u32 s3, {w}\ns_cbranch_scc1 {p}")
        A("s_branch L_k")
        A.label("L_ve")
    else:
        A("s_cmp_lt_u32 s3, 4")
        A("s_cbranch_scc1 L_k")

    WB = 64
    XP = 16
    A(f"s_setprio {vprio}")
    if clk: A("s_memtime s[100:101]\ns_waitcnt lgkmcnt(0)\nv_mov_b32 v127, s100")
    if vt or vt2 or sw2 > 0 or vdl or kp: A("s_memrealtime s[86:87]")
    A("s_sub_u32 s3, s3, 4")
    A("s_mov_b32 s42, 896\ns_mov_b32 s43, 0x20000")
    A("s_mov_b32 s63, 0")
    if pt1:
        A("s_cmp_lg_u32 s3, 2\ns_cbranch_scc1 L_pt1_e")
        lanes = []
        def off(code, reg): A(code); return reg
        kv = off(f"s_lshl_b32 s44, s4, 25\ns_add_u32 s44, s44, 0x1e00000\ns_lshl_b32 s7, s5, {CS}\ns_add_u32 s44, s44, s7", 44)
        if 'x' in pt1: lanes.append((16, None))
        if 'k' in pt1: lanes.append((18, 44))
        if 'v' in pt1: lanes.append((20, 44))
        if 'q' in pt1:
            A(f"s_and_b32 s45, s5, 3\ns_mul_i32 s45, s45, {112*8192}\ns_lshl_b32 s7, s4, 3\ns_lshr_b32 s46, s5, 2\ns_xor_b32 s46, s46, {wqx}\ns_add_u32 s7, s7, s46\ns_lshl_b32 s7, s7, 7\ns_add_u32 s45, s45, s7\ns_add_u32 s46, s45, {111*8192}")
            lanes += [(22, 45), (22, 46)]
        A("s_mul_i32 s59, s4, 28\ns_min_u32 s7, s5, 27\ns_add_u32 s59, s59, s7")
        if 'g' in pt1:
            A(f"s_and_b32 s47, s59, 3\ns_mul_i32 s47, s47, {112*3584}\ns_lshr_b32 s7, s59, 3\ns_lshl_b32 s7, s7, 7\ns_add_u32 s47, s47, s7\ns_add_u32 s48, s47, {111*3584}")
            lanes += [(60, 47), (60, 48)]
        if 'o' in pt1:
            A("s_lshl_b32 s49, s4, 9\ns_lshl_b32 s7, s5, 3\ns_add_u32 s49, s49, s7\ns_mul_i32 s49, s49, 896\ns_add_u32 s50, s49, 229376\ns_mul_i32 s51, s59, 7168")
            lanes += [(24, 49), (24, 50), (32, 51)]
        if 'w' in pt1:
            A(f"s_lshl_b32 s52, s4, 5\ns_add_u32 s52, s52, s5\ns_lshl_b32 s52, s52, 12\ns_add_u32 s52, s52, {WS_H1 + 3072}\ns_add_u32 s53, s52, 0x100000")
            lanes += [(38, 52), (38, 53)]
        if 'u' in pt1: lanes.append((34, None))
        A("v_mov_b32 v30, 0")
        for i, (pr_, of_) in enumerate(lanes):
            if of_ is not None: A(f"v_writelane_b32 v30, s{of_}, {i}")
        A("s_bitcmp1_b32 s59, 2\ns_waitcnt lgkmcnt(0)\ns_cselect_b64 s[60:61], s[30:31], s[28:29]")
        for i, (pr_, of_) in enumerate(lanes):
            A(f"v_writelane_b32 v28, s{pr_}, {i}\nv_writelane_b32 v29, s{pr_+1}, {i}")
        A("v_add_co_u32 v28, vcc, v28, v30\nv_addc_co_u32 v29, vcc, 0, v29, vcc")
        A(f"s_mov_b64 exec, {(1 << len(lanes)) - 1}\nglobal_load_dword v27, v[28:29], off{ptf}\ns_mov_b64 exec, -1")
        A.label("L_pt1_e")
    A("s_cmp_eq_u32 s3, 1\ns_cbranch_scc1 L_pro_q")
    if 'P1' in CH: A("s_cmp_eq_u32 s3, 2\ns_cbranch_scc1 P1")
    if 'P2' in CH: A("s_cmp_eq_u32 s3, 3\ns_cbranch_scc1 P2")
    A("s_cmp_gt_u32 s3, 1\ns_cbranch_scc1 L_v_b0")
    A("s_cmp_gt_u32 s5, 27\ns_cbranch_scc1 L_v_b0")
    A(f"s_mul_i32 s59, s4, 28\ns_add_u32 s59, s59, s5\ns_xor_b32 s63, s59, {gux}\ns_lshr_b32 s63, s63, 3\ns_movk_i32 s48, 3584\ns_mov_b32 s46, 1605632\ns_and_b32 s62, s59, 3")
    A("s_branch L_pro_c")
    A.label("L_pro_q")
    A(f"s_and_b32 s62, s5, 3\ns_lshl_b32 s63, s4, 3\ns_lshr_b32 s45, s5, 2\ns_xor_b32 s45, s45, {wqx}\ns_add_u32 s63, s63, s45\ns_movk_i32 s48, 0x2000\ns_mov_b32 s46, 3670016")
    A("s_mov_b32 s59, 0x80000000")
    A.label("L_pro_c")
    A("s_mul_i32 s7, s62, 112\ns_mul_i32 s44, s7, s48\ns_lshl_b32 s45, s63, 7\ns_add_u32 s44, s44, s45\ns_sub_u32 s46, s46, s44")
    A("s_lshl_b32 s7, s7, 1\ns_mul_i32 s45, s48, 14")
    A("v_and_b32 v14, 7, v0\nv_lshrrev_b32 v15, 3, v0")
    A("v_mul_u32_u24 v5, s45, v15\nv_lshl_add_u32 v5, v14, 4, v5")
    A("v_mul_u32_u24 v4, 28, v15\nv_add_u32 v4, s7, v4\nv_lshlrev_b32 v1, 4, v0")
    A("s_mov_b32 s62, s59")
    for k in range(2, 14):
        A(f"s_add_u32 s{47+k}, s{46+k}, s48")
    A("s_mov_b32 s47, 0x20000\ns_mov_b32 s63, 1")
    A("s_bitcmp1_b32 s62, 2")
    A("s_waitcnt lgkmcnt(0)")
    estamp(3)
    A("s_cselect_b64 s[28:29], s[30:31], s[28:29]")
    A("s_cmp_lt_i32 s62, 0")
    A("s_cselect_b64 s[28:29], s[22:23], s[28:29]")
    A("s_mov_b32 s40, s16\ns_mov_b32 s41, s17")
    A("s_add_u32 s44, s28, s44\ns_addc_u32 s45, s29, 0")
    A(f"buffer_load_dwordx4 v[24:27], v1, s[40:43], 0 offen{xf}")
    A(f"buffer_load_dwordx4 v[{XP}:{XP+3}], v4, s[40:43], 0 offen{xf}")
    A(f"buffer_load_dwordx3 v[{XP+4}:{XP+6}], v4, s[40:43], 0 offen offset:16{xf}")
    A("s_cmp_lt_i32 s62, 0\ns_cbranch_scc1 L_v_tl")
    if wsoff: A(f"s_add_u32 s38, s38, {wsoff}\ns_addc_u32 s39, s39, 0")
    A("s_load_dword s6, s[38:39], 0")
    A("s_barrier")
    if fq:
        A(f"v_mov_b32 v7, {L_F}\ns_mov_b32 s69, 0")
        lds_wait("L_v_fq", "s_cmp_lt_u32 s7, 1", F_QP, "s69", "v13", "v7", sleep=2)
    elif fdelay: A(f"s_sleep {fdelay}")
    A.label("L_v_tl")
    for k in range(14):
        r = WB + 4 * k
        A(f"buffer_load_dwordx4 v[{r}:{r+3}], v5, s[44:47], {('s%d' % (47+k)) if k else '0'} offen{tflag}")
    estamp(4)
    if prew:
        A(f"s_mov_b32 s8, s38\ns_mov_b32 s9, s39\ns_mov_b32 s10, {WS_SIZE}\ns_mov_b32 s11, 0x20000")
        A(f"s_lshl_b32 s7, s4, 5\ns_add_u32 s7, s7, s5\ns_lshl_b32 s0, s7, 8\ns_add_u32 s0, s0, {WS_Q}\ns_lshl_b32 s7, s7, 12\ns_add_u32 s7, s7, {WS_H1}")
        A(f"s_cmp_lt_i32 s62, 0\ns_cselect_b32 s0, s0, {WS_SIZE}\ns_cselect_b32 s7, s7, {WS_SIZE}")
        A("v_mov_b32 v28, 0\nv_mov_b32 v29, 0\nv_mov_b32 v30, 0\nv_mov_b32 v31, 0\nv_lshlrev_b32 v6, 2, v0")
        A("buffer_store_dword v28, v6, s[8:11], s0 offen")
        for i in range(4 if prew else 0):
            A(f"buffer_store_dwordx4 v[28:31], v1, s[8:11], s7 offen offset:{1024*i}")
    A("s_cmp_ge_i32 s62, 0\ns_cbranch_scc1 L_v")
    A.label("L_v_b0")
    A("s_waitcnt lgkmcnt(0)")
    if wsoff: A(f"s_add_u32 s38, s38, {wsoff}\ns_addc_u32 s39, s39, 0")
    A("s_load_dword s6, s[38:39], 0")
    if dyn is not None:
        A(f"s_cmp_lg_u32 s3, {tbpw}\ns_cbranch_scc1 L_v_ntb")
        A(f"s_cmp_ge_u32 s5, {tbc}\ns_cbranch_scc1 L_v_ntb")
        A(f"s_mul_i32 s7, s4, {tbs}\ns_add_u32 s7, s7, {WS_TB}\nv_mul_u32_u24 v30, {8 * tbs}, v3\nv_lshl_add_u32 v30, v2, 3, v30\nv_add_u32 v30, s7, v30\nv_mov_b32 v32, s86\nv_mov_b32 v33, s86")
        if tbl < 16: A(f"v_cmp_gt_u32 vcc, {tbl}, v2\ns_mov_b64 exec, vcc")
        A(f"global_store_dwordx2 v30, v[32:33], s[38:39]{tbf}")
        if tbl < 16: A("s_mov_b64 exec, -1")
        A.label("L_v_ntb")
    def pretouch():
        A(f"s_cmp_lg_u32 s3, {ptw}\ns_cbranch_scc1 L_v_npt")
        if 'v' in pt or 'V' in pt:
            A(f"s_lshl_b32 s0, s4, 25\ns_add_u32 s0, s0, 0x1e00000\ns_lshl_b32 s7, s5, {CS}\ns_add_u32 s0, s0, s7")
            A(f"v_lshlrev_b32 v29, {BS}, v0\nv_add_u32 v29, s0, v29\ns_mov_b64 exec, {'0xffff' if 'V' in pt else '0x101'}")
            A(f"global_load_dword v28, v29, s[20:21]{ptf}")
        if 'o' in pt:
            A("s_lshl_b32 s0, s4, 9\ns_lshl_b32 s7, s5, 3\ns_add_u32 s0, s0, s7\ns_mul_i32 s0, s0, 896\ns_mov_b64 exec, 3\nv_mul_u32_u24 v29, 229376, v0\nv_add_u32 v29, s0, v29")
            A(f"global_load_dword v27, v29, s[24:25]{ptf}")
            A("s_mul_i32 s0, s4, 28\ns_min_u32 s7, s5, 27\ns_add_u32 s0, s0, s7\ns_mul_i32 s0, s0, 7168\ns_mov_b64 exec, 1\nv_mov_b32 v30, s0")
            A(f"global_load_dword v26, v30, s[32:33]{ptf}")
        if 'w' in pt:
            A(f"s_lshl_b32 s0, s4, 5\ns_add_u32 s0, s0, s5\ns_lshl_b32 s0, s0, 12\ns_add_u32 s0, s0, {WS_H1 + 3072}\ns_mov_b64 exec, 3\nv_lshlrev_b32 v31, 20, v0\nv_add_u32 v31, s0, v31")
            A(f"global_load_dword v25, v31, s[38:39]{ptf}")
        A("s_mov_b64 exec, -1")
        A.label("L_v_npt")
    if pt and ptb: pretouch()
    A("s_barrier")
    if pt and not ptb: pretouch()
    if dyn is not None:
        A("s_cmp_lg_u32 s3, 3\ns_cbranch_scc1 L_v_ntp")
        A(f"v_mul_u32_u24 v30, {tbs}, v0\nv_add_u32 v30, {WS_TB}, v30\nv_mov_b32 v31, {L_F}\nv_mov_b32 v44, {dyn}")
        for k in range(tbn): A(f"v_mov_b32 v{40+k}, s86")
        def tb_issue(k):
            A(f"s_mov_b64 exec, 0xff\nglobal_load_dword v{40+k}, v30, s[38:39] offset:{8 * tbs * k}\ns_mov_b64 exec, -1")
        def tb_use(k, left):
            A(f"s_waitcnt vmcnt({left})")
            A(f"v_sub_u32 v45, s86, v{40+k}\nv_cmp_gt_u32 vcc, {tbw}, v45\nv_cndmask_b32 v45, 0, v45, vcc\nv_max_u32 v44, v44, v45")
            for mod in ("quad_perm:[1,0,3,2]", "quad_perm:[2,3,0,1]", "row_ror:4"):
                A(f"v_max_u32_dpp v44, v44, v44 {mod} {DPPM}")
            A(f"v_subrev_u32 v45, {dyn}, v44\ns_mov_b64 exec, 1\nds_write_b32 v31, v45 offset:{F_D}\ns_mov_b64 exec, -1")
            if stamps and k == 0:
                A("v_readfirstlane_b32 s53, v45\ns_memrealtime s[58:59]\ns_waitcnt lgkmcnt(0)")
        if tbn: tb_issue(0)
        nt = len(tbt) if tbn else -1
        for k in range(nt):
            twait(f"L_v_tbt{k}", 86, tbt[k], 54, 56)
            tb_issue(k + 1)
        for k in range(nt + 1): tb_use(k, nt - k)
        for k in range(nt + 1, tbn if tbn else 0):
            tb_issue(k)
            tb_use(k, 0)
        if stamps: A("v_readfirstlane_b32 s52, v44")
        A.label("L_v_ntp")
    if spt:
        A(f"s_cmp_lg_u32 s3, 3\ns_cbranch_scc1 L_v_nspt")
        if sptc < 32: A(f"s_cmp_ge_u32 s5, {sptc}\ns_cbranch_scc1 L_v_nspt")
        if sptt: twait("L_v_sptt", 86, sptt, 62, 60)
        if 'v' in spt:
            A(f"s_lshl_b32 s0, s4, 25\ns_add_u32 s0, s0, 0x1e00000\ns_lshl_b32 s7, s5, {CS}\ns_add_u32 s0, s0, s7\ns_load_dword s44, s[20:21], s0")
        if 'o' in spt:
            A("s_lshl_b32 s0, s4, 9\ns_lshl_b32 s7, s5, 3\ns_add_u32 s0, s0, s7\ns_mul_i32 s0, s0, 896\ns_add_u32 s1, s0, 229376\ns_load_dword s45, s[24:25], s0\ns_load_dword s46, s[24:25], s1")
            A("s_mul_i32 s0, s4, 28\ns_min_u32 s7, s5, 27\ns_add_u32 s0, s0, s7\ns_mul_i32 s0, s0, 7168\ns_load_dword s47, s[32:33], s0")
        if 'w' in spt:
            A(f"s_lshl_b32 s0, s4, 5\ns_add_u32 s0, s0, s5\ns_lshl_b32 s0, s0, 12\ns_add_u32 s0, s0, {WS_H1 + 3072}\ns_add_u32 s1, s0, 0x100000\ns_load_dword s48, s[38:39], s0\ns_load_dword s49, s[38:39], s1")
        if 'u' in spt: A("s_load_dword s50, s[34:35], 0")
        A("s_waitcnt lgkmcnt(0)")
        A.label("L_v_nspt")
    if warm1e == 3:
        A("s_cmp_lg_u32 s3, 3\ns_cbranch_scc1 L_v_nw1")
        if w1d: A(f"s_sleep {w1d}")
        A(f"s_lshl_b32 s0, s4, 5\ns_add_u32 s0, s0, s5\ns_lshl_b32 s0, s0, 12\ns_add_u32 s0, s0, {WS_H1}\nv_lshlrev_b32 v31, 4, v0\nv_add_u32 v31, s0, v31")
        A(f"global_load_dwordx4 v[24:27], v31, s[38:39]{w1f}\nglobal_load_dwordx4 v[24:27], v31, s[38:39] offset:1024{w1f}")
        A(f"s_mov_b32 exec_hi, 0\nglobal_load_dwordx4 v[24:27], v31, s[38:39] offset:2048{w1f}\ns_mov_b64 exec, -1")
        A.label("L_v_nw1")
    if 'P3' in CH: A("s_cmp_eq_u32 s3, 2\ns_cbranch_scc1 P3")
    if 'P8' in CH: A("s_cmp_eq_u32 s3, 3\ns_cbranch_scc1 P8")
    if 'P3' in CH or 'P8' in CH: A.label("L_v_r2")
    A.label("L_v")
    VB = 128
    FA, ONE = "v7", "v8"
    A(f"s_mov_b32 s8, s38\ns_mov_b32 s9, s39\ns_mov_b32 s10, {WS_SIZE}\ns_mov_b32 s11, 0x20000")
    A("s_mov_b32 s40, s16\ns_mov_b32 s41, s17")
    A(f"s_lshl_b32 s0, s4, 25\ns_add_u32 s0, s0, 0x1e00000\ns_add_u32 s7, s5, {crot}\ns_and_b32 s7, s7, 31\ns_lshl_b32 s7, s7, {CS}\ns_add_u32 s0, s0, s7")
    A(f"s_add_u32 s64, s20, s0\ns_addc_u32 s65, s21, 0\ns_mov_b32 s66, {NREC}\ns_mov_b32 s67, 0x20000\ns_mov_b32 s68, {8<<BS}\ns_mov_b32 s69, 0")
    A("s_mov_b32 s32, s34\ns_mov_b32 s33, s35\ns_mov_b32 s34, 896\ns_mov_b32 s35, 0x20000")
    A("s_getreg_b32 s17, hwreg(HW_REG_XCC_ID, 0, 3)")
    if stamps: A("v_mov_b32 v125, 0\ns_mov_b32 s90, 0\ns_mov_b32 s92, 0\ns_mov_b32 s98, 0\ns_mov_b32 s72, 0\ns_mov_b32 s74, 0\ns_mov_b32 s76, 0")
    if stamps and dyn is not None: A(f"v_writelane_b32 v125, s53, 13\ns_sub_u32 s7, s52, {dyn}\nv_writelane_b32 v125, s7, 14\nv_writelane_b32 v125, s58, 12")
    A("s_mov_b32 s16, 0x05040100\ns_mov_b32 s18, 0x07060302")
    A("s_mov_b32 s19, 0x0c0c0400\ns_mov_b32 s39, 0x04000c0c")
    A("s_mov_b32 s12, 0x07060500\ns_mov_b32 s13, 0x07060501\ns_mov_b32 s14, 0x07060502\ns_mov_b32 s15, 0x07060503")
    A(f"v_mov_b32 {FA}, {L_F}\nv_mov_b32 {ONE}, 1\nv_mov_b32 v11, {OOB}")
    A("s_cmp_eq_u32 s63, 0\ns_cbranch_scc1 L_v_nt")
    A(f"s_and_b32 s45, s62, 0xf8\ns_lshl_b32 s45, s45, 8\ns_and_b32 s46, s62, 7\ns_lshl_b32 s46, s46, 5\ns_add_u32 s45, s45, s46\ns_add_u32 s45, s45, {WS_PF}")
    A(f"s_lshl_b32 s44, s4, 13\ns_xor_b32 s46, s5, {qsx}\ns_lshl_b32 s46, s46, 8\ns_add_u32 s44, s44, s46\ns_add_u32 s44, s44, {WS_Q}")
    A(f"s_cmp_lt_i32 s62, 0\ns_cselect_b32 s44, s44, s45\ns_cselect_b32 s45, 5, 8\ns_cselect_b32 s0, 0, {WS_SIZE}\ns_cselect_b32 s1, {WS_QB - WS_Q}, 0")
    A("v_lshrrev_b32 v13, 5, v0\nv_lshlrev_b32 v13, 4, v13\nv_lshlrev_b32 v10, s45, v14\nv_add3_u32 v10, v10, v13, s44")
    A("v_and_b32 v13, 0x18, v0\nv_cmp_eq_u32 vcc, 0, v13\nv_cndmask_b32 v10, v11, v10, vcc")
    A(f"s_waitcnt vmcnt({16+NPW})")
    estamp(5)
    for p in range(4):
        A(f"v_lshlrev_b32 v{32+2*p}, 16, v{24+p}\nv_and_b32 v{33+2*p}, 0xffff0000, v{24+p}")
    A(f"v_pk_add_f32 {pr(46)}, {pr(32)}, {pr(34)}\nv_pk_add_f32 {pr(48)}, {pr(36)}, {pr(38)}\nv_pk_add_f32 {pr(46)}, {pr(46)}, {pr(48)}\nv_add_f32 v46, v46, v47")
    wave_sum_to_sgpr(46, 48)
    A(f"v_mov_b32 v30, {f32(1.0/448)}\nv_mul_f32 v46, s48, v30")
    A("v_cmp_gt_u32 vcc, 56, v0")
    for p in range(4):
        A(f"v_pk_add_f32 {pr(32+2*p)}, {pr(32+2*p)}, {pr(46)} op_sel_hi:[1,0] neg_lo:[0,1] neg_hi:[0,1]")
    A(f"v_pk_mul_f32 {pr(24)}, {pr(32)}, {pr(32)}")
    for p in range(1, 4):
        A(f"v_pk_fma_f32 {pr(24)}, {pr(32+2*p)}, {pr(32+2*p)}, {pr(24)}")
    A("v_add_f32 v24, v24, v25\nv_cndmask_b32 v24, 0, v24, vcc")
    wave_sum_to_sgpr(24, 48)
    A("v_mul_f32 v24, s48, v30")
    A("v_cvt_pk_bf16_f32 v25, v46, v24\nv_lshlrev_b32 v46, 16, v25\nv_and_b32 v24, 0xffff0000, v25")
    A(f"v_add_f32 v24, {f32(1e-5)}, v24")
    round_bf16(24, 25)
    A("v_sqrt_f32 v24, v24")
    round_bf16(24, 25)
    A("v_rcp_f32 v28, v24")
    A(f"s_waitcnt vmcnt({14+NPW})")
    for p in range(7):
        A(f"v_lshlrev_b32 v{32+2*p}, 16, v{XP+p}\nv_and_b32 v{33+2*p}, 0xffff0000, v{XP+p}")
    for p in range(7):
        A(f"v_pk_add_f32 {pr(32+2*p)}, {pr(32+2*p)}, {pr(46)} op_sel_hi:[1,0] neg_lo:[0,1] neg_hi:[0,1]")
    for p in range(7):
        A(f"v_cvt_pk_bf16_f32 v{XP+p}, v{32+2*p}, v{33+2*p}")
    for p in range(7):
        A(f"v_lshlrev_b32 v{32+2*p}, 16, v{XP+p}\nv_and_b32 v{33+2*p}, 0xffff0000, v{XP+p}")
    for p in range(7):
        A(f"v_pk_mul_f32 {pr(46+2*p)}, {pr(32+2*p)}, {pr(28)} op_sel_hi:[1,0]")
    for p in range(7):
        A(f"v_pk_fma_f32 {pr(32+2*p)}, {pr(46+2*p)}, {pr(24)}, {pr(32+2*p)} op_sel_hi:[1,0,1] neg_lo:[1,0,0] neg_hi:[1,0,0]")
    for p in range(7):
        A(f"v_pk_fma_f32 {pr(46+2*p)}, {pr(32+2*p)}, {pr(28)}, {pr(46+2*p)} op_sel_hi:[1,0,1]")
    for p in range(7):
        A(f"v_cvt_pk_bf16_f32 v{XP+p}, v{46+2*p}, v{47+2*p}")
    A("s_waitcnt lgkmcnt(0)")
    epoch()
    pad('P1')
    A("s_lshl_b32 s17, s17, 29\ns_and_b32 s7, s6, 0x1fffffff\ns_or_b32 s17, s17, s7")
    A("s_cmp_lt_i32 s62, 0\ns_cselect_b32 s7, s17, s6\nv_mov_b32 v124, s7")
    for i in range(8):
        A(f"v_mov_b32 v{32+i}, 0")
    for u in range(7):
        A(f"s_waitcnt vmcnt({14 - (2*u + 2) + NPW})")
        if u == 0: estamp(6)
        if u == 6: estamp(7)
        ra = WB + 8 * u; rb = ra + 4
        for q in range(4):
            A(f"v_perm_b32 v{40+2*q}, v{rb+q}, v{ra+q}, s16\nv_perm_b32 v{41+2*q}, v{rb+q}, v{ra+q}, s18")
        for q in range(8):
            A(f"v_dot2c_f32_bf16 v{32+q}, v{40+q}, v{XP+u}")
    for i in range(4):
        A(f"v_permlane32_swap_b32 v{32+i}, v{36+i}")
    A(f"v_pk_add_f32 {pr(32)}, {pr(32)}, {pr(36)}\nv_pk_add_f32 {pr(34)}, {pr(34)}, {pr(38)}")
    for i in range(4):
        A(f"v_add_f32_dpp v{32+i}, v{32+i}, v{32+i} row_ror:8 {DPPM}")
    for i in range(4):
        A(f"v_mov_b32 v{36+i}, v{32+i}")
    for i in range(4):
        A(f"v_permlane16_swap_b32 v{32+i}, v{36+i}")
    A(f"v_pk_add_f32 {pr(32)}, {pr(32)}, {pr(36)}\nv_pk_add_f32 {pr(34)}, {pr(34)}, {pr(38)}")
    for i in range(4):
        A(f"v_perm_b32 v{32+i}, v{32+i}, v124, s{12+i}")
    if prew: A("s_waitcnt vmcnt(0)")
    if qwt:
        A("buffer_store_dwordx4 v[32:35], v10, s[8:11], 0 offen sc1")
    else:
        A(f"buffer_store_dwordx4 v[32:35], v10, s[8:11], s0 offen{qpf}")
        if 'q' in abl: A(f"s_cmp_lt_i32 s62, 0\ns_cselect_b32 s1, {WS_SIZE}, s1")
        if 'p' in abl: A(f"s_cmp_lt_i32 s62, 0\ns_cselect_b32 s1, s1, {WS_SIZE}")
        if 's' not in abl: A(f"buffer_store_dwordx4 v[32:35], v10, s[8:11], s1 offen{qsf}")
    if fq: lds_inc(FA, ONE, F_QP)
    stamp(1)
    A("s_branch L_v_t")
    A.label("L_v_nt")
    A("s_waitcnt lgkmcnt(0)")
    epoch()
    A.label("L_v_t")
    A(f"v_lshrrev_b32 v5, 3, v2\nv_and_b32 v14, 7, v2\nv_lshlrev_b32 v6, 4, v14\nv_lshl_add_u32 v6, v5, {BS+2}, v6\nv_lshl_add_u32 v6, v3, {BS}, v6")
    A("s_lshl_b32 s7, s3, 7\nv_add_u32 v6, s7, v6")
    if vb:
        A(f"s_lshl_b32 s0, s4, 25\ns_add_u32 s0, s0, 0x1e00000\ns_add_u32 s64, s20, s0\ns_addc_u32 s65, s21, 0\ns_mov_b32 s66, 0x200000")
        if vb == 1:
            A("v_lshrrev_b32 v5, 2, v2\nv_lshl_add_u32 v5, v3, 2, v5\nv_and_b32 v6, 3, v2\nv_lshlrev_b32 v6, 4, v6\nv_lshl_add_u32 v6, v5, 9, v6")
            A("s_lshr_b32 s7, s5, 3\ns_lshl_b32 s7, s7, 15\ns_lshl_b32 s0, s3, 13\ns_add_u32 s7, s7, s0\ns_and_b32 s0, s5, 7\ns_lshl_b32 s0, s0, 6\ns_add_u32 s7, s7, s0\nv_add_u32 v6, s7, v6")
        else:
            A("v_lshrrev_b32 v5, 3, v2\nv_lshl_add_u32 v5, v3, 1, v5\nv_and_b32 v6, 7, v2\nv_lshlrev_b32 v6, 4, v6\nv_lshl_add_u32 v6, v5, 9, v6")
            A("s_lshr_b32 s7, s5, 2\ns_lshl_b32 s7, s7, 14\ns_lshl_b32 s0, s3, 12\ns_add_u32 s7, s7, s0\ns_and_b32 s0, s5, 3\ns_lshl_b32 s0, s0, 7\ns_add_u32 s7, s7, s0\nv_add_u32 v6, s7, v6")
    if lb:
        A("s_lshl_b32 s7, s2, 4\nv_and_b32 v9, 1, v0\nv_lshlrev_b32 v9, 3, v9\nv_lshl_add_u32 v9, v3, 1, v9\nv_add_u32 v9, s7, v9")
    else:
        A("s_lshl_b32 s7, s2, 3\nv_lshlrev_b32 v9, 1, v3\nv_add_u32 v9, s7, v9")
    A("buffer_load_ushort v126, v9, s[40:43], 0 offen")
    A(f"s_lshl_b32 s7, s4, 5\ns_lshl_b32 s0, s3, 3\ns_add_u32 s7, s7, s0\ns_lshl_b32 s7, s7, 12\ns_mul_i32 s0, s5, {rs1}\ns_add_u32 s7, s7, s0\ns_add_u32 s7, s7, {WS_H1}")
    A("s_mov_b32 s80, 0\ns_mov_b32 s81, -1\ns_mov_b32 s82, 0xff00ff00\ns_mov_b32 s83, 0xff00ff00\ns_mov_b32 s84, 0xff000000\ns_mov_b32 s85, 0xff00ff00")
    A("v_lshrrev_b32 v16, 1, v3\nv_and_b32 v17, 1, v3\nv_lshlrev_b32 v121, 5, v17\nv_lshl_add_u32 v121, v16, 4, v121\nv_mov_b32 v17, 64\nv_cndmask_b32 v121, v121, v17, s[82:83]")
    A("v_lshl_add_u32 v121, v14, 12, v121\nv_add_u32 v121, s7, v121\nv_cndmask_b32 v121, v121, v11, s[84:85]")
    A(f"v_cmp_gt_u32 vcc, {2 if lb else 1}, v2\nv_cndmask_b32 v9, v11, v9, vcc")
    A(f"s_mul_i32 s7, s2, {h2s}\ns_add_u32 s7, s7, {WS_H2}\nv_lshlrev_b32 v122, 4, v0\nv_add_u32 v122, s7, v122")
    NP2 = 2 if split2 else 8
    if lb: NP2 = 4
    if h2h: NP2 = 2
    SO2 = 20 if not lb else 48
    if split2:
        A("s_lshl_b32 s0, s3, 1\ns_add_u32 s0, s0, s4")
    if h2h:
        for k in range(2):
            A(f"s_add_u32 s7, s0, {k}\ns_and_b32 s7, s7, 7\ns_lshl_b32 s{SO2+k}, s7, 10")
    elif lb:
        for k in range(2):
            A(f"s_add_u32 s7, s0, {k}\ns_and_b32 s7, s7, 7\ns_lshl_b32 s{SO2+2*k}, s7, 11\ns_add_u32 s{SO2+2*k+1}, s{SO2+2*k}, 1024")
    else:
        for k in range(NP2):
            A(f"s_add_u32 s7, {'s0' if split2 else 's4'}, {k}\ns_and_b32 s7, s7, 7\ns_lshl_b32 s{20+k}, s7, 10")
    A(f"s_lshl_b32 s87, s6, {1 if h2h else 2 if lb else (1 if split2 else 3)}\nv_lshlrev_b32 v120, 4, v0\nv_add_u32 v120, {L_P}, v120")
    if lb:
        A(f"v_and_b32 v18, 3, v0\nv_lshl_add_u32 v18, v3, 2, v18\nv_lshlrev_b32 v18, 4, v18\nv_add_u32 v18, {L_C2}, v18")
        A("s_lshl_b32 s7, s3, 2\nv_add_u32 v19, s7, v18\ns_mov_b32 s22, 0x000f000f\ns_mov_b32 s23, 0x000f000f")
    elif split2:
        A(f"v_and_b32 v18, 1, v0\nv_lshl_add_u32 v18, v3, 1, v18\nv_lshlrev_b32 v18, 4, v18\nv_add_u32 v18, {L_C2}, v18")
        A("s_lshl_b32 s7, s3, 2\nv_add_u32 v19, s7, v18\ns_mov_b32 s22, 0x00030003\ns_mov_b32 s23, 0x00030003")
    if h1v:
        A(f"s_lshl_b32 s7, s4, 5\ns_add_u32 s7, s7, s5\ns_lshl_b32 s7, s7, 12\ns_add_u32 s7, s7, {WS_H1}\nv_and_b32 v14, 1, v0")
        A(f"v_lshrrev_b32 v21, 1, v0\nv_mul_u32_u24 v21, {rs1}, v21\nv_add_u32 v21, s7, v21\nv_lshl_add_u32 v20, v14, 5, v21")
        A(f"v_lshlrev_b32 v22, 4, v14\nv_lshl_add_u32 v22, v3, 2, v22\nv_add_u32 v22, {L_AT}, v22")
        A(f"s_mul_i32 s24, s6, 3\ns_mov_b64 s[26:27], -1\ns_mov_b32 s28, 0xaaaaaaaa\ns_mov_b32 s29, 0xaaaaaaaa\ns_mov_b32 s30, {f32(LOG2E/16)}")
    def warm2_loads():
        A("s_cmp_lt_u32 s3, 2\ns_cbranch_scc1 L_v_nw2")
        A(f"s_mul_i32 s7, s2, 3584\ns_lshl_b32 s0, s3, 11\ns_add_u32 s7, s7, s0\ns_add_u32 s7, s7, {WS_H2 - 4096}\nv_lshlrev_b32 v23, 4, v0")
        A(f"buffer_load_dwordx4 v[28:31], v23, s[8:11], s7 offen{w2f}\nbuffer_load_dwordx4 v[24:27], v23, s[8:11], s7 offen offset:1024{w2f}")
        A.label("L_v_nw2")
    if warm2 == 1: warm2_loads()
    pad('P2', page=True)
    if not nki: lds_wait("L_v_wki", "s_cmp_lt_u32 s7, 4", F_KI, "s69", "v13", FA, sleep=kisleep)
    if warm2 == 2: warm2_loads()
    if not h1v: stamp(2)
    if (vt or vt2) and gofs: A(f"s_cmp_lt_u32 s4, 2\ns_cselect_b32 s7, {gofs}, 0\ns_add_u32 s86, s86, s7")
    if vt: twait("L_v_vt", 86, vt, 62, 61)
    def dl_loads(pf, lds_, first, win, base, dl, tmp, thr, last):
        A(f"s_add_u32 s{thr}, s{base}, {dl}")
        for n in range(first, 16):
            if n >= last:
                A.label(f"{pf}_j{n}")
                A(f"s_waitcnt vmcnt({win-1})")
                A(lds_[n])
                continue
            A.label(f"{pf}_w{n}")
            A(f"s_getreg_b32 s{tmp}, hwreg(HW_REG_IB_STS, 0, 4)\ns_cmp_le_u32 s{tmp}, {win-1}\ns_cbranch_scc1 {pf}_i{n}")
            A(f"s_memrealtime s[{tmp}:{tmp+1}]\ns_waitcnt lgkmcnt(0)\ns_sub_u32 s{tmp}, s{tmp}, s{thr}\ns_cmp_gt_u32 s{tmp}, 0x80000000\ns_cbranch_scc1 {pf}_w{n}")
            A(f"s_branch {pf}_b{n}")
            A.label(f"{pf}_i{n}")
            A(lds_[n])
        A(f"s_branch {pf}_e")
        for n in range(first, last):
            A.label(f"{pf}_b{n}")
            A(lds_[n])
        if last < 16: A(f"s_branch {pf}_j{last}")
        A.label(f"{pf}_e")
    if vdl:
        vl = [f"buffer_load_dwordx4 v[{VB+4*n}:{VB+4*n+3}], v6, s[64:67], {'0' if n < 8 else 's68'} offen offset:{512*(n%8)} nt" for n in range(16)]
        for n in range(wv): A(vl[n])
        dl_loads("L_vd", vl, wv, wv, 86, vdl, 62, 61, vdn)
        lds_inc(FA, ONE, F_VI)
    if kp:
        vl = [f"buffer_load_dwordx4 v[{VB+4*n}:{VB+4*n+3}], v6, s[64:67], {'0' if n < 8 else 's68'} offen offset:{512*(n%8)} nt" for n in range(16)]
        if vb: vl = [f"s_mov_b32 s68, {n << 17}\nbuffer_load_dwordx4 v[{VB+4*n}:{VB+4*n+3}], v6, s[64:67], s68 offen{vfl}" for n in range(16)]
        v0t = vp0 or (kp0 + (16 - kn0) * kp)
        A(f"s_lshr_b32 s57, {g0m}, s4\ns_and_b32 s57, s57, 1")
        for n in range(16):
            if vpw and n >= vpw: A(f"s_waitcnt vmcnt({vpw-1})")
            if dyn is not None: dwait(f"L_vp{n}", 86, int(v0t + n * (vp or kp)), 16 - kn0 + n, FA, "v13", 62, 61)
            else: gwait(f"L_vp{n}", 86, int(v0t + n * (vp or kp)), int(v0t - g0v0 + n * g0vp) if g0vp else int(K0 + (16 - kn0 + n) * KP) if g0kp or g0k0 is not None else int(v0t + n * (vp or kp)), 57, 62, 61)
            A(vl[n])
        lds_inc(FA, ONE, F_VI)
    n = 0
    for sg in range(2 if not (vdl or kp) else 0):
        for e in range(8):
            r = VB + 32 * sg + 4 * e
            if wv and n >= wv: A(f"s_waitcnt vmcnt({wv-1})")
            if vt2 and n == 8: twait("L_v_vt2", 86, vt2, 62, 61)
            A(f"buffer_load_dwordx4 v[{r}:{r+3}], v6, s[64:67], {'0' if sg == 0 else 's68'} offen offset:{512*e} nt")
            n += 1
            if n == 16 - vwo and vwl >= 8: lds_inc(FA, ONE, F_VI)
    A(f"s_setprio {vprio2}")
    stamp(3)
    FB, OB, PA = 64, 32, 100
    def vperm(sg, p):
        A(f"s_waitcnt vmcnt({16 - (8*sg + 2*p + 2)})")
        if 16 - (8*sg + 2*p + 2) == vwl and vwl < 8: lds_inc(FA, ONE, F_VI)
        ra = VB + 32 * sg + 8 * p; rb = ra + 4
        for q in range(4):
            A(f"v_perm_b32 v{FB + 4*(2*q) + p}, v{rb+q}, v{ra+q}, s16")
            A(f"v_perm_b32 v{FB + 4*(2*q+1) + p}, v{rb+q}, v{ra+q}, s18")
    for p in range(4): vperm(0, p)
    pad('P3')
    A.label("L_v_wp")
    A(f"ds_read_b32 v13, {FA} offset:{F_P}\nds_read_b32 v14, {FA} offset:{F_FAST}")
    for i in range(3):
        A(f"ds_read_b128 v[{PA+4*i}:{PA+4*i+3}], v120 offset:{1024*i}")
    A("s_add_u32 s69, s69, 1\ns_waitcnt lgkmcnt(0)\nv_readfirstlane_b32 s7, v13")
    A(f"s_cmp_gt_u32 s69, {spin_max}\ns_cbranch_scc1 L_end")
    A("s_cmp_eq_u32 s7, 0\ns_cbranch_scc1 L_v_wp")
    stamp(4)
    A("v_readfirstlane_b32 s61, v14")
    for sg in range(2):
        if sg:
            for p in range(4): vperm(1, p)
        for i in range(8):
            c = "0" if sg == 0 else f"v[{OB+4*i}:{OB+4*i+3}]"
            A(f"v_mfma_f32_16x16x32_bf16 v[{OB+4*i}:{OB+4*i+3}], v[{PA+4*sg}:{PA+4*sg+3}], v[{FB+4*i}:{FB+4*i+3}], {c}")
    stamp(6)
    for i in range(8):
        A(f"v_add_f32_dpp v{112+i}, v{OB+4*i+1}, v{OB+4*i} row_shl:8 {DPPM} bound_ctrl:0")
    for i in range(4):
        A(f"v_cndmask_b32 v{112+i}, v{112+i}, v{116+i}, s[80:81]")
    for i in range(4):
        A(f"v_cndmask_b32 v{112+i}, v{112+i}, v{108+i}, s[82:83]")
    for i in range(4):
        A(f"v_perm_b32 v{112+i}, v{112+i}, v12, s{12 + i}")
    if h1wt:
        A("buffer_store_dwordx4 v[112:115], v121, s[8:11], 0 offen sc1")
    else:
        A("s_cmp_lg_u32 s61, 4\ns_cbranch_scc1 L_v_st1")
        A(f"buffer_store_dwordx4 v[112:115], v121, s[8:11], 0 offen{h1sf}")
        A("s_branch L_v_st2")
        A.label("L_v_st1")
        A(f"s_mov_b32 s7, {WS_H1B - WS_H1}\nbuffer_store_dwordx4 v[112:115], v121, s[8:11], s7 offen sc1")
        A.label("L_v_st2")
    lds_inc(FA, ONE, F_ST)
    stamp(7)
    if h1v:
        A(f"s_cmp_eq_u32 s61, 4\ns_cselect_b32 s31, 0, {WS_H1B - WS_H1}")
        if sw2 >= 0:
            A("s_cmp_gt_u32 s3, 1\ns_cbranch_scc1 L_v_nsw\ns_cmp_ge_u32 s2, 112\ns_cbranch_scc1 L_v_fin")
            if sw2 > 0: twait("L_v_swt", 86, sw2, 62, 60)
            A(f"s_mul_i32 s7, s2, {h2s}\ns_lshl_b32 s62, s3, 12\ns_add_u32 s7, s7, s62\ns_add_u32 s7, s7, {WS_H2}\ns_add_u32 s62, s8, s7\ns_addc_u32 s63, s9, 0")
            for i in range(32):
                A(f"s_load_dword s60, s[62:63], {128*i}{swf}")
            A("s_branch L_v_h1done")
            A.label("L_v_nsw")
        if hp:
            for i in range(12): A(f"v_mov_b32 v{128+i}, 0")
        lds_wait("L_v_wst", "s_cmp_lt_u32 s7, 4", F_ST, "s69", "v13", FA)
        if p4 == 0: pad('P4')
        if h1d: A(f"s_sleep {h1d}")
        if h1t and dyn is not None: dwait("L_v_h1t", 86, h1t, None, FA, "v13", 62, 60)
        elif h1t: gwait("L_v_h1t", 86, h1t, h1t - GSH, 57, 62, 60)
        hop1("L_v", FA, ONE, "v20", "v21", "v22", "s19", "s39", "s30", "s24", 26, 28, "s31", "s69", "v13", "s_mov_b32 s7, s3")
    if p4 == 1: pad('P4')
    A(f"s_cmp_ge_u32 s2, {NC}\ns_cbranch_scc1 L_v_fin")
    A("s_mov_b64 s[0:1], -1")
    if p2w == 'pub': lds_wait("L_v_w2", "s_cmp_lt_u32 s7, 4", F_PUB, "s69", "v13", FA)
    elif p2w == 'o': lds_wait("L_v_w2", "s_cmp_lt_u32 s7, 1", F_O, "s69", "v13", FA)
    stamp(8)
    if stagger2 and not split2:
        A("s_mov_b32 s7, s3")
        A.label("L_v_stg2")
        A("s_cmp_eq_u32 s7, 0\ns_cbranch_scc1 L_v_p2")
        A(f"s_sleep {stagger2}\ns_sub_u32 s7, s7, 1\ns_branch L_v_stg2")
    if pp2:
        def p2l():
            for k in range(2):
                A(f"buffer_load_dwordx4 v[{72+4*k}:{75+4*k}], v122, s[8:11], s{20+k} offen sc1")
        p2l()
        A(f"s_sleep {pp2}")
        A.label("L_v_p2")
        stamp(5)
        p2l()
        A("s_add_u32 s69, s69, 1")
        A(f"s_cmp_gt_u32 s69, {spin_max}\ns_cbranch_scc1 L_end")
        A("s_waitcnt vmcnt(2)")
        for k in range(2):
            r = 72 + 4 * k
            A(f"v_perm_b32 v{96+2*k}, v{r+1}, v{r}, s19\nv_perm_b32 v{97+2*k}, v{r+3}, v{r+2}, s39")
        A("v_add_u32 v112, v96, v97\nv_add3_u32 v112, v112, v98, v99")
        A("v_cmp_ne_u32 vcc, s87, v112")
        A("s_mov_b64 exec, vcc")
        A("s_cbranch_execnz L_v_p2")
        A("s_mov_b64 exec, -1")
        stamp(9)
        A(f"v_pk_add_f32 {pr(64)}, {pr(72)}, {pr(76)}\nv_pk_add_f32 {pr(66)}, {pr(74)}, {pr(78)}")
    else:
        if p2d: A(f"s_sleep {p2d}")
        if p2t: twait("L_v_p2t", 86, p2t, 62, 60)
        if p2s:
            A("s_branch L_v_p2e")
        A.label("L_v_p2")
        if p2s:
            A(f"s_sleep {p2s}")
            A.label("L_v_p2e")
        stamp(5)
        A("s_mov_b64 exec, s[0:1]")
        for k in range(NP2):
            A(f"buffer_load_dwordx4 v[{64+4*k}:{67+4*k}], v122, s[8:11], s{SO2+k} offen{p2f}")
        A("s_add_u32 s69, s69, 1")
        A(f"s_cmp_gt_u32 s69, {spin_max}\ns_cbranch_scc1 L_end")
        for k in range(NP2):
            r = 64 + 4 * k
            A(f"s_waitcnt vmcnt({NP2-1-k})")
            A(f"v_perm_b32 v{96+2*k}, v{r+1}, v{r}, s19\nv_perm_b32 v{97+2*k}, v{r+3}, v{r+2}, s39")
            if k == 0:
                A("v_add_u32 v112, v96, v97")
            else:
                A(f"v_add3_u32 v112, v112, v{96+2*k}, v{97+2*k}")
        A("v_cmp_ne_u32 s[0:1], s87, v112")
        A("s_cmp_lg_u64 s[0:1], 0")
        A("s_cbranch_scc1 L_v_p2")
        A("s_mov_b64 exec, -1")
        stamp(9)
        for st_ in ((4,) if h2h else (8, 4) if lb else (4,) if split2 else (16, 8, 4)):
            for base in range(64, 64 + st_, 2):
                A(f"v_pk_add_f32 {pr(base)}, {pr(base)}, {pr(base+st_)}")
    A("v_permlane32_swap_b32 v64, v66\nv_permlane32_swap_b32 v65, v67")
    A(f"v_pk_add_f32 {pr(64)}, {pr(64)}, {pr(66)}")
    A("v_permlane16_swap_b32 v64, v65")
    A("v_add_f32 v64, v64, v65")
    for mod in (() if lb else ("quad_perm:[2,3,0,1]",)) + ("row_ror:4", "row_ror:8"):
        A(f"v_add_f32_dpp v64, v64, v64 {mod} {DPPM}")
    if split2:
        A("s_mov_b64 exec, s[22:23]\nds_write_b32 v19, v64")
        A(f"s_mov_b64 exec, 1\nds_add_rtn_u32 v13, {FA}, {ONE} offset:{F_C2}\ns_mov_b64 exec, -1")
        A("ds_read_b128 v[68:71], v18\ns_waitcnt lgkmcnt(0)\nv_readfirstlane_b32 s7, v13")
        A(f"v_pk_add_f32 {pr(68)}, {pr(68)}, {pr(70)}\nv_add_f32 v64, v68, v69")
        A("s_cmp_lg_u32 s7, 3\ns_cbranch_scc1 L_v_fin")
    A(f"v_mov_b32_dpp v68, v64 quad_perm:{'[2,3,0,1]' if lb else '[1,0,3,2]'} {DPPM}")
    A("v_cvt_pk_bf16_f32 v65, v64, v68")
    A("v_and_b32 v68, 0xffff0000, v65\nv_lshlrev_b32 v64, 16, v65")
    A(f"v_mul_f32 v66, {f32(-LOG2E)}, v68\nv_exp_f32 v66, v66\nv_add_f32 v66, 1.0, v66\nv_rcp_f32 v66, v66\nv_mul_f32 v66, v68, v66")
    round_bf16(66, 67)
    A("v_mul_f32 v64, v64, v66")
    round_bf16(64, 67)
    A("v_lshlrev_b32 v126, 16, v126\nv_add_f32 v64, v64, v126\nv_cvt_pk_bf16_f32 v64, v64, v64")
    A(f"buffer_store_short v64, v9, s[32:35], 0 offen{osc}")
    stamp(10)
    A("s_cmp_lg_u32 s2, 0\ns_cbranch_scc1 L_v_fin")
    A("v_lshlrev_b32 v13, 24, v0")
    A(f"buffer_store_dword v12, v13, s[8:11], 0 offen{osc}")
    A.label("L_v_fin")
    stamp(11)
    def amplify(pf, vreg):
        A(f"v_readlane_b32 s40, v{vreg}, {amp[0]}\nv_readlane_b32 s41, v{vreg}, 0\nv_readlane_b32 s42, v{vreg}, 11")
        A(f"s_sub_u32 s40, s40, s41\ns_cmp_gt_u32 s40, 3000\ns_cselect_b32 s40, 0, s40\ns_mul_i32 s40, s40, {amp[1]}")
        A.label(f"{pf}_amp")
        A(f"s_memrealtime s[44:45]\ns_waitcnt lgkmcnt(0)\ns_sub_u32 s44, s44, s41\ns_cmp_lt_u32 s44, s40\ns_cbranch_scc1 {pf}_amp")
    def v_tail():
        if stamps: A("s_add_u32 s3, s3, 4")
        stamps_out(range(12), 125)
        if amp is not None and amp[2] == 'V': amplify("L_v", 125)
        if clk:
            A("s_sub_u32 s7, s3, 4\ns_or_b32 s7, s2, s7\ns_cmp_lg_u32 s7, 0\ns_cbranch_scc1 L_clk_end")
            A("v_readlane_b32 s41, v125, 0")
            A.label("L_clk_w")
            A(f"s_memrealtime s[44:45]\ns_memtime s[46:47]\ns_waitcnt lgkmcnt(0)\ns_sub_u32 s44, s44, s41\ns_cmp_lt_u32 s44, {clk}\ns_cbranch_scc1 L_clk_w")
            A(f"v_readfirstlane_b32 s47, v127\ns_sub_u32 s40, s46, s47\ns_lshr_b32 s40, s40, 2\ns_min_u32 s40, s40, 30000\ns_add_u32 s40, s40, 4000")
            A.label("L_clk")
            A("s_memrealtime s[44:45]\ns_waitcnt lgkmcnt(0)\ns_sub_u32 s44, s44, s41\ns_cmp_lt_u32 s44, s40\ns_cbranch_scc1 L_clk")
            A.label("L_clk_end")
        if gam is not None:
            idx, waves, fac = gam[:3]
            gmask = gam[3] if len(gam) > 3 else 255
            A("s_sub_u32 s7, s3, 4\ns_or_b32 s7, s2, s7\ns_cmp_lg_u32 s7, 0\ns_cbranch_scc1 L_gam_end")
            A("v_readlane_b32 s41, v125, 0")
            A.label("L_gam_w")
            A("s_memrealtime s[44:45]\ns_waitcnt lgkmcnt(0)\ns_sub_u32 s44, s44, s41\ns_cmp_lt_u32 s44, 3000\ns_cbranch_scc1 L_gam_w")
            A(f"v_lshlrev_b32 v1, 10, v0\nv_add_u32 v1, {WS_DBG}, v1\nv_mov_b32 v40, 4000\nv_mov_b32 v41, -1000\nv_mov_b32 v42, -1000\nv_mov_b32 v43, 0\ns_mov_b32 s49, 0")
            for k in range(4):
                A(f"s_mov_b32 s7, {k * 65536}")
                A("buffer_load_dword v2, v1, s[8:11], s7 offen sc1")
                for i, w in enumerate(waves):
                    A(f"buffer_load_dword v{3+i}, v1, s[8:11], s7 offen offset:{w*64 + idx*4} sc1")
                A("s_waitcnt vmcnt(0)")
                A("v_subrev_u32 v2, s41, v2\nv_min_i32 v40, v40, v2")
                for i, w in enumerate(waves):
                    A(f"v_subrev_u32 v{3+i}, s41, v{3+i}")
                    if grel: A(f"v_sub_u32 v{3+i}, v{3+i}, v2")
                    A(f"v_cmp_lt_i32 vcc, 3000, v{3+i}\nv_cndmask_b32 v{3+i}, v{3+i}, v42, vcc")
                    if gsel is not None and k not in gsel[0]: continue
                    A(f"v_cmp_gt_i32 vcc, v{3+i}, v41\nv_mov_b32 v44, {8*k}\nv_cndmask_b32 v43, v43, v44, vcc\nv_max_i32 v41, v41, v{3+i}")
            A("s_mov_b32 s46, 4000\ns_mov_b32 s47, -1000")
            for l in range(64):
                A(f"v_readlane_b32 s44, v40, {l}\ns_min_i32 s46, s46, s44")
                if (gmask >> (l & 7)) & 1 and (gsel is None or (l >> 3) in gsel[1]):
                    A(f"v_readlane_b32 s45, v41, {l}\nv_readlane_b32 s48, v43, {l}\ns_add_u32 s48, s48, {l >> 3}\ns_cmp_gt_i32 s45, s47\ns_cselect_b32 s49, s48, s49\ns_max_i32 s47, s47, s45")
            if grel: A("s_mov_b32 s46, 0")
            A(f"s_sub_u32 s40, s47, s46\ns_min_u32 s40, s40, 3000\ns_mul_i32 s40, s40, {fac}\ns_add_u32 s40, s40, 4000")
            if garg: A("s_mul_i32 s40, s49, 100\ns_add_u32 s40, s40, 4000")
            A.label("L_gam")
            A("s_memrealtime s[44:45]\ns_waitcnt lgkmcnt(0)\ns_sub_u32 s44, s44, s41\ns_cmp_lt_u32 s44, s40\ns_cbranch_scc1 L_gam")
            A.label("L_gam_end")
        A("s_endpgm")


    if stamps and ia: A("s_branch L_v_so")
    else: v_tail()

    A.label("L_k")
    KB = 64
    FA, ONE = "v24", "v25"
    if kprio: A(f"s_setprio {kprio}")
    if wot and not KH: A("s_memrealtime s[52:53]")
    A(f"s_lshl_b32 s6, s4, 25\ns_add_u32 s6, s6, 0x1e00000\ns_add_u32 s7, s5, {crot}\ns_and_b32 s7, s7, 31\ns_lshl_b32 s7, s7, {CS}\ns_add_u32 s6, s6, s7")
    A("v_and_b32 v4, 7, v2\nv_lshlrev_b32 v4, 9, v4\nv_lshrrev_b32 v5, 3, v2\nv_lshl_add_u32 v4, v5, 6, v4\nv_lshl_add_u32 v4, v3, 4, v4")
    A(f"s_lshl_b32 s7, s3, {BS+2}\nv_add_u32 v4, s7, v4")
    A(f"s_mov_b32 s48, {1<<BS}\ns_mov_b32 s49, {2<<BS}\ns_mov_b32 s50, {3<<BS}")
    A(f"s_mov_b32 s42, {NREC}\ns_mov_b32 s43, 0x20000")
    A(f"s_mov_b32 s10, {WS_SIZE}\ns_mov_b32 s11, 0x20000")
    A("v_mov_b32 v8, 0\nv_mov_b32 v9, 0\nv_mov_b32 v10, 0\nv_mov_b32 v11, 0")
    A(f"v_lshlrev_b32 v7, 4, v2\nv_add_u32 v7, {L_AT}, v7")
    A("s_cmp_lg_u32 s3, 0\ns_cbranch_scc1 L_k_noz")
    A("ds_write_b128 v7, v[8:11]")
    A.label("L_k_noz")
    A("s_waitcnt lgkmcnt(0)")
    estamp(3)
    A("s_add_u32 s40, s18, s6\ns_addc_u32 s41, s19, 0")
    if wsoff: A(f"s_add_u32 s38, s38, {wsoff}\ns_addc_u32 s39, s39, 0")
    A("s_mov_b32 s8, s38\ns_mov_b32 s9, s39")
    A("s_load_dword s6, s[38:39], 0")
    if not b0late: A("s_barrier")
    estamp(4)
    so = ["0", "s48", "s49", "s50"]
    loads = []
    for tau in range(4):
        for t in range(4):
            r = KB + 16 * tau + 4 * t
            loads.append(f"buffer_load_dwordx4 v[{r}:{r+3}], v4, s[40:43], {so[tau]} offen offset:{128*t} nt")
    if kdelay: A(f"s_sleep {kdelay}")
    n0 = min(wk, 16) if wk else 16
    if kp: n0 = kn0
    for ii, l in enumerate(loads[:n0]):
        if b0late and ii == b0late: A("s_barrier")
        A(l)
    if b0late and b0late >= n0: A("s_barrier")
    estamp(5)
    if stamps: A("v_mov_b32 v63, 0\ns_mov_b32 s100, 0")
    A("s_mov_b32 s20, 0x05040100\ns_mov_b32 s21, 0x07060302")
    A("s_mov_b32 s12, 0x07060500\ns_mov_b32 s13, 0x07060501\ns_mov_b32 s14, 0x07060502\ns_mov_b32 s15, 0x07060503")
    A("s_mov_b32 s58, 0x0c0c0400\ns_mov_b32 s59, 0x04000c0c")
    A("s_lshl_b32 s16, s4, 5\ns_add_u32 s16, s16, s5")
    A("s_mul_i32 s61, s4, 28\ns_min_u32 s7, s5, 27\ns_add_u32 s61, s61, s7")
    A("s_lshl_b32 s44, s4, 9\ns_lshl_b32 s45, s5, 3\ns_add_u32 s44, s44, s45\ns_mul_i32 s44, s44, 896")
    A("s_add_u32 s44, s24, s44\ns_addc_u32 s45, s25, 0")
    A("s_mul_i32 s46, s61, 7168\ns_add_u32 s46, s32, s46\ns_addc_u32 s47, s33, 0")
    A("s_lshl_b32 s7, s3, 8\ns_add_u32 s7, s7, 3584\nv_lshlrev_b32 v11, 4, v2\nv_add_u32 v11, s7, v11")
    A("v_cmp_eq_u32 vcc, 1, v3\nv_mov_b32 v13, 229376\nv_cndmask_b32 v13, 0, v13, vcc\nv_add_u32 v11, v11, v13")
    A("v_cmp_gt_u32 vcc, 2, v3")
    A("v_mov_b32 v6, s46\nv_mov_b32 v13, s44\nv_cndmask_b32 v6, v6, v13, vcc")
    A("v_mov_b32 v7, s47\nv_mov_b32 v13, s45\nv_cndmask_b32 v7, v7, v13, vcc")
    A("v_add_co_u32 v6, vcc, v6, v11\nv_addc_co_u32 v7, vcc, 0, v7, vcc")
    OW = 128
    if lb:
        A("v_lshrrev_b32 v16, 1, v3\ns_lshl_b32 s7, s3, 4\nv_add_u32 v13, s7, v2")
        A(f"s_lshl_b32 s7, s16, 6\ns_add_u32 s7, s7, {WS_H2}\nv_and_b32 v17, 1, v3\nv_lshlrev_b32 v8, 5, v17\nv_lshl_add_u32 v8, v16, 4, v8\nv_mov_b32 v11, {h2s}\nv_mad_u32_u24 v8, v13, v11, v8\nv_add_u32 v8, s7, v8")
    else:
        A("v_lshrrev_b32 v16, 1, v3\nv_lshl_add_u32 v13, v2, 1, v16\ns_lshl_b32 s7, s3, 5\nv_add_u32 v13, s7, v13")
        A(f"s_lshl_b32 s7, s16, 5\ns_add_u32 s7, s7, {WS_H2}\nv_and_b32 v17, 1, v3\nv_lshlrev_b32 v8, 4, v17\nv_mov_b32 v11, {h2s}\nv_mad_u32_u24 v8, v13, v11, v8\nv_add_u32 v8, s7, v8")
    if h2h:
        A(f"s_lshl_b32 s7, s16, 5\ns_add_u32 s7, s7, {WS_H2}\nv_lshlrev_b32 v8, 4, v16\nv_mov_b32 v11, {h2s}\nv_mad_u32_u24 v8, v13, v11, v8\nv_add_u32 v8, s7, v8")
        A(f"v_mov_b32 v11, {OOB}\nv_cmp_eq_u32 vcc, 0, v17\nv_cndmask_b32 v8, v11, v8, vcc")
    A(f"v_mov_b32 v11, {OOB}\nv_cmp_gt_u32 vcc, {NC}, v13\nv_cndmask_b32 v8, v11, v8, vcc")
    if hrot: A(f"v_add_u32 v13, {hrot}, v13")
    A("v_and_b32 v13, 7, v13\nv_cmp_eq_u32 vcc, s4, v13\nv_cndmask_b32 v22, v11, v8, vcc\nv_cndmask_b32 v21, v8, v11, vcc")
    A(f"v_bfe_u32 v18, v2, 2, 1\nv_lshlrev_b32 v9, 6, v18\nv_lshl_add_u32 v9, v3, 4, v9\nv_add_u32 v9, {L_AT}, v9")
    A("v_and_b32 v14, 1, v2\nv_lshlrev_b32 v13, 9, v14\nv_bfe_u32 v15, v2, 1, 1\nv_lshl_add_u32 v13, v15, 6, v13\nv_lshl_add_u32 v13, v3, 4, v13")
    A("v_lshlrev_b32 v15, 10, v16\nv_lshl_add_u32 v15, v14, 9, v15\nv_lshl_add_u32 v15, v17, 4, v15")
    A(f"s_lshl_b32 s7, s3, 7\ns_add_u32 s7, s7, {L_S}\nv_add_u32 v15, s7, v15")
    A("v_lshrrev_b32 v17, 1, v2\nv_cmp_eq_u32 s[60:61], v17, v16")
    A(f"v_lshlrev_b32 v18, 9, v18\nv_lshl_add_u32 v18, v14, 7, v18\nv_lshl_add_u32 v18, v3, 5, v18\nv_add_u32 v18, {L_S}, v18")
    A(f"s_lshl_b32 s7, s4, 13\ns_lshl_b32 s44, s3, 11\ns_add_u32 s7, s7, s44\ns_add_u32 s7, s7, {WS_Q}\nv_lshlrev_b32 v23, 4, v0\nv_add_u32 v19, s7, v23")
    A(f"s_lshl_b32 s7, s3, 8\nv_lshlrev_b32 v20, 3, v2\nv_lshl_add_u32 v20, v16, 7, v20\nv_and_b32 v17, 1, v3\nv_lshl_add_u32 v20, v17, 2, v20\nv_add_u32 v20, s7, v20")
    A("s_getreg_b32 s17, hwreg(HW_REG_XCC_ID, 0, 3)")
    A(f"v_add_u32 v23, {L_P}, v23")
    A(f"s_lshl_b32 s7, s16, 12\ns_add_u32 s7, s7, {WS_H1}\nv_and_b32 v14, 1, v0")
    A(f"v_lshrrev_b32 v17, 1, v0\nv_mul_u32_u24 v17, {rs1}, v17\nv_add_u32 v17, s7, v17\nv_lshl_add_u32 v16, v14, 5, v17")
    A(f"v_lshlrev_b32 v10, 4, v14\nv_lshl_add_u32 v10, v3, 2, v10\nv_add_u32 v10, {L_AT}, v10")
    if clean:
        NCL = rs1 * 8 // 16
        assert NCL + 4 <= 64
        A(f"s_lshl_b32 s7, s16, 12\ns_mul_i32 s44, s3, {rs1*8}\ns_add_u32 s7, s7, s44\ns_add_u32 s7, s7, {WS_H1}")
        A(f"s_lshl_b32 s44, s16, 8\ns_lshl_b32 s45, s3, 6\ns_add_u32 s44, s44, s45\ns_add_u32 s44, s44, {WS_Q - 16*NCL}")
        A(f"v_mov_b32 v172, s44\nv_mov_b32 v173, s7\nv_cmp_gt_u32 vcc, {NCL}, v0\nv_cndmask_b32 v172, v172, v173, vcc\nv_lshl_add_u32 v172, v0, 4, v172")
        A(f"v_cmp_gt_u32 vcc, {NCL+4}, v0\nv_cndmask_b32 v172, v11, v172, vcc")
        for i in range(4): A(f"v_mov_b32 v{168+i}, 0")
    A(f"v_mov_b32 {FA}, {L_F}\nv_mov_b32 {ONE}, 1")
    A("s_mov_b32 s23, 0")
    if gofs: A(f"s_waitcnt lgkmcnt(0)\ns_cmp_lt_u32 s4, 2\ns_cselect_b32 s7, {gofs}, 0\ns_add_u32 s52, s52, s7")
    for i in range(32):
        A(f"v_mov_b32 v{OW+i}, 0")
    def gload(so):
        fl = pfl if (qwt and so == "0") else gf
        if so == "0" and gf0 is not None: fl = gf0
        if qwt: so = "0"
        if 'g' in abl: so = "s10"
        A(f"buffer_load_dwordx4 v[32:35], v19, s[8:11], {so} offen{fl}")
        A(f"buffer_load_dwordx4 v[36:39], v19, s[8:11], {so} offen offset:1024{fl}")
    if kdl:
        assert gpos >= 16 and wot
        A("s_waitcnt lgkmcnt(0)")
        dl_loads("L_kd", loads, n0, wk, 52, kdl, 54, 56, kdn)
    pad('P5', page=True)
    def qhint():
        A(f"s_lshl_b32 s7, s4, 13\ns_lshl_b32 s18, s3, 11\ns_add_u32 s7, s7, s18\ns_add_u32 s7, s7, {WS_Q}\ns_add_u32 s18, s8, s7\ns_addc_u32 s19, s9, 0")
        for i in range(8): A(f"s_load_dword s{24+i}, s[18:19], {256*i} glc")
    if kp:
        assert gpos >= 16 and wot
        A(f"s_lshr_b32 s57, {g0m}, s4\ns_and_b32 s57, s57, 1")
        for i in range(n0, 16):
            if kpw and i >= kpw: A(f"s_waitcnt vmcnt({kpw-1})")
            if dyn is not None: dwait(f"L_kp{i}", 52, int(kp0 + (i - n0) * kp), i - n0, FA, "v28", 54, 56)
            else: gwait(f"L_kp{i}", 52, int(kp0 + (i - n0) * kp), int(K0 + (i - n0) * KP), 57, 54, 56)
            A(loads[i])
            if qh and i == qh: qhint()
        if qh:
            lds_inc(FA, ONE, F_KI)
            A("s_waitcnt lgkmcnt(0)")
            epoch()
            A("s_mov_b32 s51, 0")
            A.label("L_k_qh")
            A("s_xor_b32 s7, s24, s6")
            for i in range(1, 8): A(f"s_xor_b32 s{24+i}, s{24+i}, s6\ns_or_b32 s7, s7, s{24+i}")
            A(f"s_and_b32 s7, s7, 0xff\ns_cbranch_scc0 L_k_qhe\ns_add_u32 s51, s51, 1\ns_cmp_ge_u32 s51, {qhn}\ns_cbranch_scc1 L_k_qhe")
            for i in range(8): A(f"s_load_dword s{24+i}, s[18:19], {256*i} glc")
            A("s_waitcnt lgkmcnt(0)\ns_branch L_k_qh")
            A.label("L_k_qhe")
    for i in range(n0, 16 if not (kdl or kp) else 0):
        if i == gpos:
            stamp(2)
            gload("0")
        A(f"s_waitcnt vmcnt({wk-1 + (2 if i >= gpos else 0)})")
        if kt and i == ktn: twait("L_k_kt", 52, kt, 54, 56)
        if i == n0: estamp(6)
        if i == n0 + 3: estamp(7)
        if i == n0 + 6: estamp(8)
        A(loads[i])
        if i + 1 == kipos and kipos < 16: lds_inc(FA, ONE, F_KI)
    if gpos >= 16:
        if gt:
            lds_inc(FA, ONE, F_KI)
            A(f"s_waitcnt lgkmcnt(0)\ns_add_u32 s56, s52, {gt}")
            A.label("L_k_gt")
            A("s_memrealtime s[54:55]\ns_waitcnt lgkmcnt(0)\ns_sub_u32 s54, s54, s56\ns_cmp_gt_u32 s54, 0x80000000\ns_cbranch_scc1 L_k_gt")
        if gt2: twait("L_k_gt2", 52, gt2, 54, 56)
        if gdelay:
            if kipos >= 16: lds_inc(FA, ONE, F_KI)
            A(f"s_sleep {gdelay}")
        stamp(2)
        gload("0")
    if not qh:
        A("s_waitcnt lgkmcnt(0)")
        epoch()
    A("v_and_b32 v14, 3, v0\nv_lshlrev_b32 v14, 3, v14\nv_bfe_u32 v5, v12, v14, 8")
    A("s_lshl_b32 s17, s17, 29\ns_and_b32 s7, s6, 0x1fffffff\ns_or_b32 s17, s17, s7\nv_mov_b32 v45, 0x1fffffff")
    if kdrain < wk: A(f"s_waitcnt vmcnt({kdrain + 2})")
    if kipos >= 16 and not gdelay and not gt and not qh: lds_inc(FA, ONE, F_KI)
    stamp(1)
    GB = 24
    A(f"s_waitcnt vmcnt({max(16 - gpos, 0)})")
    A("s_branch L_k_qc")
    A.label("L_k_q")
    A(f"s_and_b32 s7, s23, {qslow}\ns_cmp_eq_u32 s7, {qslow}\ns_cselect_b32 s7, {WS_QB - WS_Q}, 0")
    A("s_mov_b64 exec, s[0:1]")
    gload("s7")
    A("s_mov_b64 exec, -1")
    A(f"s_add_u32 s23, s23, 1\ns_cmp_gt_u32 s23, {spin_max}\ns_cbranch_scc1 L_end")
    A("s_waitcnt vmcnt(0)")
    A.label("L_k_qc")
    A("v_perm_b32 v40, v33, v32, s58\nv_perm_b32 v41, v35, v34, s59\nv_perm_b32 v42, v37, v36, s58\nv_perm_b32 v43, v39, v38, s59")
    A("v_xor_b32 v40, v40, v41\nv_xor_b32 v42, v42, v43\nv_xor_b32 v40, s17, v40\nv_xor_b32 v42, s17, v42\nv_or_b32 v40, v40, v42")
    A("v_and_b32 v41, v45, v40\nv_cmp_ne_u32 s[0:1], 0, v41\nv_cmp_ne_u32 vcc, 0, v40")
    if 'g' in abl: A("s_mov_b64 vcc, 0")
    elif not noq: A("s_cmp_lg_u64 s[0:1], 0\ns_cbranch_scc1 L_k_q")
    if not force_slow:
        A("s_cbranch_vccnz L_k_mix")
        lds_inc(FA, ONE, F_FAST)
        A.label("L_k_mix")
    if tries: A("v_writelane_b32 v63, s23, 15")
    if tries and qh: A("v_writelane_b32 v63, s51, 14")
    if mask:
        for i in range(8):
            A(f"v_and_b32 v{32+i}, 0xffffff00, v{32+i}")
    for i in range(4):
        A(f"v_permlane32_swap_b32 v{32+i}, v{36+i}")
    A(f"v_pk_add_f32 {pr(32)}, {pr(32)}, {pr(36)}\nv_pk_add_f32 {pr(34)}, {pr(34)}, {pr(38)}")
    A("v_permlane16_swap_b32 v32, v34\nv_permlane16_swap_b32 v33, v35")
    A(f"v_pk_add_f32 {pr(32)}, {pr(32)}, {pr(34)}\nv_cvt_pk_bf16_f32 v32, v32, v33")
    A("ds_write_b32 v20, v32")
    lds_inc(FA, ONE, F_Q)
    stamp(3)
    pad('P6')
    lds_wait("L_k_wq", "s_cmp_lt_u32 s7, 4", F_Q, "s23", "v28", FA)
    QB, DB = 32, 48
    if stamps: A("v_mov_b32 v31, v63")
    for t in range(4):
        A(f"ds_read_b128 v[{QB+4*t}:{QB+4*t+3}], v13 offset:{L_Q + 128*t}")
    A("s_waitcnt vmcnt(0) lgkmcnt(0)")
    for t in range(4):
        for tau in range(4):
            r = KB + 16 * tau + 4 * t
            c = "0" if t == 0 else f"v[{DB+4*tau}:{DB+4*tau+3}]"
            A(f"v_mfma_f32_16x16x32_bf16 v[{DB+4*tau}:{DB+4*tau+3}], v[{r}:{r+3}], v[{QB+4*t}:{QB+4*t+3}], {c}")
    A("s_mov_b64 exec, s[60:61]")
    for tau in range(4):
        A(f"ds_write_b128 v15, v[{DB+4*tau}:{DB+4*tau+3}] offset:{32*tau}")
    A(f"s_mov_b64 exec, 1\nds_add_u32 {FA}, {ONE}\ns_mov_b64 exec, -1")
    stamp(4)
    A(f"s_mov_b32 s62, {f32(LOG2E/16)}")
    A(f"s_cmp_lg_u32 s3, {smw}\ns_cbranch_scc1 L_k_nsm")
    lds_wait("L_k_w1", "s_cmp_lt_u32 s7, 4", F_SC, "s23", "v28", FA)
    for part in range(2):
        for sg in range(2):
            for hf in range(2):
                r = 64 + 16 * part + 8 * sg + 4 * hf
                A(f"ds_read_b128 v[{r}:{r+3}], v18 offset:{1024*part + 256*sg + 16*hf}")
    A("s_waitcnt lgkmcnt(0)")
    for i in range(8):
        A(f"v_pk_add_f32 {pr(64+2*i)}, {pr(64+2*i)}, {pr(80+2*i)}")
    for i in range(8):
        A(f"v_cvt_pk_bf16_f32 v{80+i}, v{64+2*i}, v{65+2*i}")
    for i in range(8):
        A(f"v_lshlrev_b32 v{64+2*i}, 16, v{80+i}")
        A(f"v_and_b32 v{65+2*i}, 0xffff0000, v{80+i}")
    A("v_max3_f32 v96, v64, v65, v66\nv_max3_f32 v97, v67, v68, v69\nv_max3_f32 v98, v70, v71, v72\nv_max3_f32 v99, v73, v74, v75")
    A("v_max3_f32 v96, v96, v76, v77\nv_max3_f32 v97, v97, v78, v79\nv_max3_f32 v96, v96, v97, v98\nv_max_f32 v96, v96, v99")
    A(f"v_max_f32_dpp v96, v96, v96 quad_perm:[1,0,3,2] {DPPM}")
    swapadd(16, 96, 97, "max")
    swapadd(32, 96, 97, "max")
    A("v_mul_f32 v97, s62, v96")
    for i in range(16):
        A(f"v_fma_f32 v{64+i}, v{64+i}, s62, -v97")
    for i in range(16):
        A(f"v_exp_f32 v{64+i}, v{64+i}")
    for i in range(8):
        A(f"v_cvt_pk_bf16_f32 v{PA+i}, v{64+2*i}, v{65+2*i}")
    A(f"ds_write_b128 v23, v[{PA}:{PA+3}]\nds_write_b128 v23, v[{PA+4}:{PA+7}] offset:1024")
    for i in range(4):
        A(f"v_pk_add_f32 {pr(64+2*i)}, {pr(64+2*i)}, {pr(72+2*i)}")
    for i in range(2):
        A(f"v_pk_add_f32 {pr(64+2*i)}, {pr(64+2*i)}, {pr(68+2*i)}")
    A("v_pk_add_f32 v[64:65], v[64:65], v[66:67]\nv_add_f32 v98, v64, v65")
    A(f"v_add_f32_dpp v98, v98, v98 quad_perm:[1,0,3,2] {DPPM}")
    swapadd(16, 98, 97)
    swapadd(32, 98, 97)
    A(f"v_mov_b32_dpp v108, v96 row_newbcast:0 {DPPM}\nv_mov_b32_dpp v109, v98 row_newbcast:0 {DPPM}")
    A(f"v_mov_b32_dpp v110, v96 row_newbcast:4 {DPPM}\nv_mov_b32_dpp v111, v98 row_newbcast:4 {DPPM}")
    A("ds_write_b128 v23, v[108:111] offset:2048")
    A(f"ds_write_b32 {FA}, {ONE} offset:{F_P}")
    stamp(6)
    A.label("L_k_nsm")
    pad('P7')
    def warm1_loads(lab):
        A(f"s_cmp_lg_u32 s3, 3\ns_cbranch_scc1 {lab}")
        A(f"buffer_load_dwordx4 v[160:163], v16, s[8:11], 0 offen{w1f}")
        A(f"buffer_load_dwordx4 v[164:167], v17, s[8:11], 0 offen offset:64{w1f}")
        A.label(lab)
    if warm1e == 1: warm1_loads("L_k_w1e")
    if not novi: lds_wait("L_k_wvi", "s_cmp_lt_u32 s7, 4", F_VI, "s23", "v28", FA, sleep=visleep)
    if wot and dyn is not None: dwait("L_k_wt", 52, wot, None, FA, "v28", 54, 56)
    elif wot:
        A(f"s_add_u32 s52, s52, {wot}")
        if GSH: A(f"s_mul_i32 s56, s57, {GSH}\ns_sub_u32 s52, s52, s56")
        A.label("L_k_wt")
        A("s_memrealtime s[54:55]\ns_waitcnt lgkmcnt(0)\ns_sub_u32 s54, s54, s52\ns_cmp_gt_u32 s54, 0x80000000\ns_cbranch_scc1 L_k_wt")
    A(f"s_setprio {kprio2}")
    if warm1e == 2: warm1_loads("L_k_w1e")
    A("s_mov_b32 s25, 0xffff\ns_cmp_eq_u32 s3, 3\ns_cselect_b32 s24, 0x00ff00ff, -1\ns_cselect_b32 s25, 0xff, s25")
    A("s_mov_b64 exec, s[24:25]")
    for e in range(8):
        if wod and e and e % wost == 0: twait(f"L_k_wt{e}", 52, wod * e, 54, 56)
        A(f"global_load_dwordx4 v[{OW+4*e}:{OW+4*e+3}], v[6:7], off offset:{896*e - 3584}{wflag}")
    A("s_mov_b64 exec, -1")
    stamp(5)
    A(f"s_cmp_eq_u32 s3, {ffw}\ns_cbranch_scc1 L_k_ffn")
    if warm1 and not warm1e:
        A("s_cmp_lg_u32 s3, 3\ns_cbranch_scc1 L_k_perm")
        wf = pfl if h1wt else w1f
        A(f"buffer_load_dwordx4 v[160:163], v16, s[8:11], 0 offen{wf}")
        A(f"buffer_load_dwordx4 v[164:167], v17, s[8:11], 0 offen offset:64{wf}")
    A("s_branch L_k_perm")
    A.label("L_k_ffn")
    A("v_mov_b32 v32, 0")
    A("s_cmp_gt_u32 s5, 27\ns_cbranch_scc1 L_k_hw")
    if 's' in abl or 'p' in abl or 'f' in abl: A("s_branch L_k_hw")
    A(f"s_mul_i32 s7, s4, 28\ns_add_u32 s7, s7, s5\ns_lshl_b32 s7, s7, 8\ns_add_u32 s7, s7, {WS_PF}\ns_add_u32 s18, s8, s7\ns_addc_u32 s19, s9, 0")
    A.label("L_k_gf")
    for i in range(4):
        A(f"s_load_dwordx16 s[{GB+16*i}:{GB+16*i+15}], s[18:19], {64*i} glc")
    A("s_add_u32 s23, s23, 1")
    A(f"s_cmp_gt_u32 s23, {spin_max}\ns_cbranch_scc1 L_end")
    A("s_waitcnt lgkmcnt(0)")
    for i in range(64):
        A(f"v_writelane_b32 v13, s{GB+i}, {i}")
    A("v_and_b32 v14, 0xff, v13\nv_cmp_ne_u32 vcc, v14, v5")
    A("s_cbranch_vccnz L_k_gf")
    if mask: A("v_and_b32 v13, 0xffffff00, v13")
    A(f"v_add_f32_dpp v13, v13, v13 row_ror:8 {DPPM}")
    swapadd(16, 13, 14)
    A("v_mov_b32 v14, v13\nv_permlane32_swap_b32 v13, v14")
    A("v_cvt_pk_bf16_f32 v34, v13, v14\nv_lshlrev_b32 v32, 16, v34\nv_and_b32 v33, 0xffff0000, v34")
    A(f"v_mul_f32 v34, {f32(-LOG2E)}, v32\nv_exp_f32 v34, v34\nv_add_f32 v34, 1.0, v34\nv_rcp_f32 v34, v34\nv_mul_f32 v32, v32, v34")
    round_bf16(32, 34)
    A("v_mul_f32 v32, v32, v33")
    A(f"v_mov_b32_dpp v33, v32 quad_perm:[1,1,3,3] {DPPM}")
    A("v_cvt_pk_bf16_f32 v32, v32, v33")
    A.label("L_k_hw")
    pad('P8')
    A(f"v_lshlrev_b32 v33, 1, v0\nv_add_u32 v33, {L_AT + 96}, v33")
    A("s_mov_b64 exec, 0x55")
    A("ds_write_b32 v33, v32")
    A(f"s_mov_b64 exec, 1\nds_write_b32 {FA}, {ONE} offset:{F_H}\ns_mov_b64 exec, -1")
    stamp(6)
    A.label("L_k_perm")
    A(f"s_mov_b32 s58, 0x0c0c0400\ns_mov_b32 s59, 0x04000c0c\ns_mov_b32 s62, {f32(LOG2E/16)}\ns_mul_i32 s64, s6, 3\ns_mov_b64 s[66:67], -1")
    A("s_mov_b32 s68, 0xaaaaaaaa\ns_mov_b32 s69, 0xaaaaaaaa\ns_mov_b32 s48, 0\ns_mov_b32 s49, -1")
    if stamps and not early: A("s_mov_b32 s72, 0\ns_mov_b32 s74, 0")
    FB2 = 64
    A(f"ds_read_b32 v23, {FA} offset:{F_FAST}")
    A("s_waitcnt vmcnt(0) lgkmcnt(0)")
    for p in range(4):
        ra = OW + 8 * p; rb = ra + 4
        for q in range(4):
            A(f"v_perm_b32 v{FB2 + 4*(2*q) + p}, v{rb+q}, v{ra+q}, s20")
            A(f"v_perm_b32 v{FB2 + 4*(2*q+1) + p}, v{rb+q}, v{ra+q}, s21")
    A(f"v_readfirstlane_b32 s1, v23\ns_cmp_eq_u32 s1, 4\ns_cselect_b32 s0, 0, {WS_H1B - WS_H1}")
    stamp(7)
    if not h1v: lds_wait("L_k_wst", "s_cmp_lt_u32 s7, 4", F_ST, "s23", "v28", FA)
    stamp(8)
    if not h1v: hop1("L_k", FA, ONE, "v16", "v17", "v10", "s58", "s59", "s62", "s64", 66, 68, "s0", "s23", "v28", "s_sub_u32 s7, 3, s3")
    A.label("L_k_w3")
    A(f"ds_read_b64 v[26:27], {FA} offset:{F_O}")
    A("ds_read_b128 v[28:31], v9") if not stamps else A("ds_read_b128 v[36:39], v9")
    AT = 36 if stamps else 28
    A("s_add_u32 s23, s23, 1")
    A("s_waitcnt lgkmcnt(0)")
    A("v_and_b32 v26, v26, v27")
    A("v_readfirstlane_b32 s7, v26")
    A(f"s_cmp_gt_u32 s23, {spin_max}\ns_cbranch_scc1 L_end")
    A("s_cmp_eq_u32 s7, 0\ns_cbranch_scc1 L_k_w3")
    stamp(10)
    for i in range(8):
        A(f"v_mfma_f32_16x16x32_bf16 v[{96+4*i}:{99+4*i}], v[{AT}:{AT+3}], v[{FB2+4*i}:{FB2+4*i+3}], 0")
    for k in range(4):
        A(f"v_cndmask_b32 v{32+k}, v{96+4*k}, v{112+4*k}, s[48:49]")
    for k in range(4):
        A(f"v_perm_b32 v{32+k}, v{32+k}, v12, s{12+k}")
    if own2:
        A("s_cmp_lg_u32 s1, 4\ns_cbranch_scc1 L_k_st1")
        A(f"buffer_store_dwordx4 v[32:35], v21, s[8:11], 0 offen{h2sf}")
        A(f"buffer_store_dwordx4 v[32:35], v22, s[8:11], 0 offen{h2of}")
        A("s_branch L_k_st2")
        A.label("L_k_st1")
    A("buffer_store_dwordx4 v[32:35], v8, s[8:11], 0 offen sc1")
    if own2: A.label("L_k_st2")
    lds_inc(FA, ONE, F_PUB)
    if clean > 1: A(f"s_sleep {clean}")
    if clean: A("buffer_store_dwordx4 v[168:171], v172, s[8:11], 0 offen sc1")
    stamp(11)
    if wbl:
        A(f"s_cmp_lg_u32 s5, {wbl}\ns_cbranch_scc1 L_k_nwb\ns_cmp_lg_u32 s3, 0\ns_cbranch_scc1 L_k_nwb")
        A("buffer_wbl2 sc1\ns_waitcnt vmcnt(0)")
        stamp(9)
        A.label("L_k_nwb")
    stamps_out(range(12), 31)
    if amp is not None and amp[2] == 'K': amplify("L_k", 31)
    A.label("L_end")
    A("s_endpgm")
    if stamps and ia:
        A.label("L_v_so")
        v_tail()
    A.raw('.section .rodata,"a"\n.p2align 6')
    A.raw(f".amdhsa_kernel {KNAME}\n  .amdhsa_next_free_vgpr 192\n  .amdhsa_next_free_sgpr 102\n  .amdhsa_accum_offset 192\n  .amdhsa_group_segment_fixed_size 0\n  .amdhsa_kernarg_size 96\n  .amdhsa_user_sgpr_count 2\n  .amdhsa_user_sgpr_kernarg_segment_ptr 1\n  .amdhsa_system_sgpr_workgroup_id_x 1\n.end_amdhsa_kernel")
    return E.text()

if __name__ == "__main__":
    out = sys.argv[1] if len(sys.argv) > 1 else "recurrent_scan__sliding_block_cached__swiglu_ffn__decode.s"
    kw = {}
    for a in sys.argv[2:]:
        k, v = a.split("=", 1)
        kw[k] = eval(v)
    open(out, "w").write(gen(**kw))
```
